```python
import torch

def _softmax(x, axis=-1):
    return torch.softmax(x, dim=axis)
def _gelu(x):
    return torch.nn.functional.gelu(x, approximate="tanh")
def _silu(x):
    return torch.nn.functional.silu(x)
def _sigmoid(x):
    return torch.sigmoid(x)
def _layernorm(x, axis=-1, eps=1e-5):
    m = x.mean(dim=axis, keepdim=True)
    v = x.var(dim=axis, keepdim=True, unbiased=False)
    return (x - m) / torch.sqrt(v + eps)
def _scatter_add(tgt, idx, src, axis=0):
    return tgt.clone().index_add_(axis, idx, src)
def _segment_sum(src, seg, n):
    out = torch.zeros((n,) + src.shape[1:], dtype=src.dtype)
    return out.index_add_(0, seg, src)
def _pad(x, pw):
    flat = tuple(v for pair in reversed(pw) for v in pair)
    return torch.nn.functional.pad(x, flat)

kernel_name = 'recurrent_scan__compressed_kv_cla__dense_activation_mish__prompt'

def setup_inputs():

    _w = (lambda a: (lambda t: t.to(torch.bfloat16) if t.is_floating_point() else t)(torch.as_tensor(a)))
    def _A_setup():
        B, H, Sq, Sk, D, M = 1, 32, 2048, 2048, 128, 640
        Dc = 4 * D
        return {
            "x": _w((lambda *s: torch.randn(*s, dtype=torch.bfloat16) * 0.05)(B, Sq, M)),
            "c_kv": _w((lambda *s: torch.randn(*s, dtype=torch.bfloat16) * 0.8)(B, Sk, Dc)),
            "w_q": _w((lambda *s: torch.randn(*s, dtype=torch.bfloat16) * 1.6)(M, H, D) * (M ** -0.5)),
            "w_uk": _w((lambda *s: torch.randn(*s, dtype=torch.bfloat16) * 1.6)(Dc, H, D) * (Dc ** -0.5)),
            "w_uv": _w((lambda *s: torch.randn(*s, dtype=torch.bfloat16) * 0.8)(Dc, H, D) * (Dc ** -0.5)),
            "w_o": _w((lambda *s: torch.randn(*s, dtype=torch.bfloat16) * 0.8)(H, D, M) * ((H * D) ** -0.5)),
        }
    _A_in = _A_setup()

    def _B_setup():
        B, S, D, F = 1, 2048, 640, 1728
        return {
            "x": _w((lambda *s: torch.randn(*s, dtype=torch.bfloat16) * 0.05)(B, S, D)),
            "w1": _w((lambda *s: torch.randn(*s, dtype=torch.bfloat16) * 0.8)(D, F) * (D ** -0.5)),
            "b1": _w((lambda *s: torch.randn(*s, dtype=torch.bfloat16) * 0.8)(F)),
            "w2": _w((lambda *s: torch.randn(*s, dtype=torch.bfloat16) * 0.2)(F, D) * (F ** -0.5)),
        }
    _B_in = _B_setup()

    return {
        "A_x": _A_in["x"],
        "A_c_kv": _A_in["c_kv"],
        "A_w_q": _A_in["w_q"],
        "A_w_uk": _A_in["w_uk"],
        "A_w_uv": _A_in["w_uv"],
        "A_w_o": _A_in["w_o"],
        "B_x": _B_in["x"],
        "B_w1": _B_in["w1"],
        "B_b1": _B_in["b1"],
        "B_w2": _B_in["w2"],
    }

def reference(A_x, A_c_kv, A_w_q, A_w_uk, A_w_uv, A_w_o, B_x, B_w1, B_b1, B_w2):
    def _A_ref(x, c_kv, w_q, w_uk, w_uv, w_o):
        B, Sq, M = x.shape[0], x.shape[1], x.shape[2]
        Sk = c_kv.shape[1]
        H, D = w_q.shape[1], w_q.shape[2]
        q = torch.einsum("bqm,mhd->bhqd", x, w_q)
        k = torch.einsum("bkc,chd->bhkd", c_kv, w_uk)
        v = torch.einsum("bkc,chd->bhkd", c_kv, w_uv)
        scores = torch.einsum("bhqd,bhkd->bhqk", q, k) * (D ** -0.5)
        off = Sk - Sq
        qi = torch.arange(Sq)[:, None]
        kj = torch.arange(Sk)[None, :]
        cmask = kj <= (qi + off)
        scores = torch.where(cmask[None, None], scores, -1e9)
        p = _softmax(scores, axis=-1)
        ctx = torch.einsum("bhqk,bhkd->bhqd", p, v)
        return torch.einsum("bhqd,hdm->bqm", ctx, w_o)

    def _B_ref(x, w1, b1, w2):
        h = torch.einsum("bsd,df->bsf", x, w1) + b1
        sp = torch.log1p(torch.exp(-torch.abs(h))) + torch.where(h > 0, h, torch.zeros_like(h))
        act = h * torch.tanh(sp)
        return torch.einsum("bsf,fd->bsd", act, w2)

    x = A_x
    xn = _layernorm(x, axis=-1)
    s = _A_ref(xn, A_c_kv, A_w_q, A_w_uk, A_w_uv, A_w_o)
    g = _silu(_B_ref(xn, B_w1, B_b1, B_w2))
    return x + s * g
```

```python
import re

_REG = re.compile(r'^(-|abs\()?([vas])(\d+)\)?$')
_RNG = re.compile(r'^(-|abs\()?([vas])\[(\d+):(\d+)\]\)?$')


def regs_of(tok):
    tok = tok.strip()
    m = _REG.match(tok)
    if m:
        return [(m.group(2), int(m.group(3)))]
    m = _RNG.match(tok)
    if m:
        return [(m.group(2), i) for i in range(int(m.group(3)), int(m.group(4)) + 1)]
    if tok in ('vcc', 'exec', 'm0', 'scc'):
        return [(tok, 0)]
    if tok in ('vcc_lo', 'vcc_hi'):
        return [('vcc', 0)]
    return []


TRANS = ('v_exp_f32', 'v_log_f32', 'v_rcp_f32', 'v_rsq_f32', 'v_sqrt_f32', 'v_sin_f32', 'v_cos_f32')


class Ins:
    __slots__ = ('text', 'op', 'kind', 'wr', 'rd', 'srcc', 'passes', 'tag', 'ws', 'dpp', 'wide')

    def __init__(self, text, tag=None):
        self.text = text
        self.tag = tag
        t = text.split(';')[0].strip()
        parts = t.split(None, 1)
        self.op = op = parts[0]
        rest = parts[1] if len(parts) > 1 else ''
        ops = []
        cur = ''
        depth = 0
        for ch in rest:
            if ch in '[(':
                depth += 1
            if ch in '])':
                depth -= 1
            if ch == ',' and depth == 0:
                ops.append(cur.strip())
                cur = ''
            else:
                cur += ch
        if cur.strip():
            ops.append(cur.strip())
        mods = ''
        if ops:
            sp = ops[-1].split(None, 1)
            if len(sp) > 1:
                ops[-1] = sp[0]
                mods = sp[1]
        self.wr = set()
        self.rd = set()
        self.srcc = set()
        self.passes = 0
        self.ws = 1
        self.dpp = False
        self.wide = False
        R = lambda i: set(regs_of(ops[i])) if i < len(ops) else set()
        allr = lambda a: set().union(*[R(i) for i in range(a, len(ops))]) if len(ops) > a else set()
        if op.endswith(':'):
            self.kind = 'label'
            self.ws = 0
        elif op.startswith('.'):
            self.kind = 'dir'
            self.ws = 0
        elif op.startswith('v_mfma'):
            self.kind = 'mfma'
            self.wr = R(0)
            self.rd = R(1) | R(2) | R(3)
            self.srcc = R(3)
            self.passes = 8 if '32x32x16' in op else 4
        elif op.startswith('v_cmp'):
            self.kind = 'valu'
            self.wr = R(0)
            self.rd = allr(1)
            if op.startswith('v_cmpx'):
                self.wr |= {('exec', 0)}
        elif op.startswith('v_permlane') and 'swap' in op:
            self.kind = 'permlane'
            self.wr = R(0) | R(1)
            self.rd = R(0) | R(1)
        elif op.startswith('v_readfirstlane') or op.startswith('v_readlane'):
            self.kind = 'readlane'
            self.wr = R(0)
            self.rd = allr(1)
        elif op.startswith('v_'):
            base = op.replace('_e32', '').replace('_e64', '').replace('_dpp', '')
            self.kind = 'trans' if base in TRANS else 'valu'
            self.wr = R(0)
            self.rd = allr(1)
            if base.startswith('v_fmac') or base.startswith('v_dot2c') or base.startswith('v_pk_fmac'):
                self.rd |= R(0)
            if 'dpp' in op or 'quad_perm' in mods or 'row_' in mods:
                self.dpp = True
                self.rd |= R(0)
            if base == 'v_cndmask_b32' and len(ops) == 3:
                self.rd |= {('vcc', 0)}
        elif op.startswith('ds_read') or op.startswith('ds_bpermute') or op.startswith('ds_swizzle'):
            self.kind = 'dsr'
            self.wr = R(0)
            self.rd = allr(1)
        elif op.startswith('ds_'):
            self.kind = 'dsw'
            self.rd = allr(0)
        elif op.startswith('buffer_load') or op.startswith('global_load'):
            if ' lds' in (' ' + mods) or 'lds' in op:
                self.kind = 'dma'
                self.rd = allr(0) | {('m0', 0)}
            else:
                self.kind = 'vld'
                self.wr = R(0)
                self.rd = allr(1)
        elif op.startswith('buffer_store') or op.startswith('global_store'):
            self.kind = 'vst'
            self.rd = allr(0)
            self.wide = 'x4' in op or 'x3' in op
            if self.wide:
                self.srcc = R(0) if op.startswith('buffer') else R(1)
        elif op == 's_waitcnt':
            self.kind = 'wait'
        elif op == 's_nop':
            self.kind = 'nop'
            self.ws = int(ops[0], 0) + 1
        elif op in ('s_barrier', 's_endpgm', 's_setprio', 's_sleep'):
            self.kind = 'misc'
        elif op.startswith('s_branch') or op.startswith('s_cbranch'):
            self.kind = 'branch'
            if 'vcc' in op:
                self.rd = {('vcc', 0)}
        elif op.startswith('s_load') or op.startswith('s_memtime') or op.startswith('s_memrealtime'):
            self.kind = 'smem'
            self.wr = R(0)
            self.rd = allr(1)
        elif op.startswith('s_cmp') or op.startswith('s_bitcmp'):
            self.kind = 'salu'
            self.rd = allr(0)
        elif op.startswith('s_'):
            self.kind = 'salu'
            self.wr = R(0)
            self.rd = allr(1)
            if 'saveexec' in op:
                self.wr |= {('exec', 0)}
            if op.startswith('s_addk') or op.startswith('s_mulk'):
                self.rd |= R(0)
        else:
            raise ValueError('unknown op: ' + text)


def check_trace(trace, name=''):
    probs = []
    VAL = ('valu', 'trans', 'permlane', 'readlane')
    n = len(trace)
    pre = [0] * (n + 1)
    for i, ins in enumerate(trace):
        pre[i + 1] = pre[i] + ins.ws

    def dist(i, j):
        return pre[j] - pre[i + 1]

    last_valu_w = {}
    last_trans_w = {}
    last_mfma_w = {}
    last_mfma_c = {}
    last_store = {}
    last_salu_m0 = -100
    last_valu_sw = {}
    vm_q = []
    lg_q = []
    smem_out = False

    def P(j, msg):
        probs.append(f'{name}[{j}] {trace[j].text.strip()}  :: {msg}')

    for j, ins in enumerate(trace):
        k = ins.kind
        if k in ('label', 'dir'):
            continue
        touched = ins.rd | ins.wr
        for (i, w) in vm_q:
            if w & touched:
                P(j, f'touches pending vmem load dst from [{i}] {trace[i].text.strip()}')
        for (i, w) in lg_q:
            if w & touched:
                if not (k == 'dsr' and not (w & ins.rd) and trace[i].kind == 'dsr'):
                    P(j, f'touches pending lgkm dst from [{i}] {trace[i].text.strip()}')
        if k == 'wait':
            m = re.search(r'vmcnt\((\d+)\)', ins.text)
            if m:
                N = int(m.group(1))
                if len(vm_q) > N:
                    vm_q = vm_q[len(vm_q) - N:] if N else []
            m = re.search(r'lgkmcnt\((\d+)\)', ins.text)
            if m:
                N = int(m.group(1))
                if smem_out and N > 0:
                    P(j, 'counted lgkmcnt with smem outstanding')
                if len(lg_q) > N:
                    lg_q = lg_q[len(lg_q) - N:] if N else []
                if N == 0:
                    smem_out = False
            continue
        if k == 'mfma':
            for r in ins.rd:
                if r in last_valu_w and dist(last_valu_w[r], j) < 2:
                    P(j, f'VALU write {r} -> MFMA read needs 2 (has {dist(last_valu_w[r], j)})')
            for r in (ins.rd - ins.srcc):
                if r in last_mfma_w:
                    i = last_mfma_w[r]
                    need = 12 if trace[i].passes == 8 else 8
                    if dist(i, j) < need:
                        P(j, f'MFMA D {r} -> MFMA A/B needs {need} (has {dist(i, j)})')
            for r in ins.srcc:
                if r in last_mfma_w:
                    i = last_mfma_w[r]
                    if trace[i].wr == ins.srcc and trace[i].passes == ins.passes:
                        pass
                    else:
                        need = 10 if trace[i].passes == 8 else 6
                        if dist(i, j) < need:
                            P(j, f'MFMA D {r} -> overlapping SrcC needs {need} (has {dist(i, j)})')
            for r in ins.wr:
                if r in last_mfma_w and r not in ins.srcc:
                    i = last_mfma_w[r]
                    need = 10 if trace[i].passes == 8 else 6
                    if dist(i, j) < need:
                        P(j, f'MFMA D {r} WAW (conservative) needs {need} (has {dist(i, j)})')
            if ('exec', 0) in last_valu_sw and dist(last_valu_sw[('exec', 0)], j) < 4:
                P(j, 'VALU exec write -> MFMA needs 4')
        else:
            for r in touched:
                if r in last_mfma_w:
                    i = last_mfma_w[r]
                    need = 12 if trace[i].passes == 8 else 8
                    if dist(i, j) < need:
                        P(j, f'MFMA D {r} -> {k} access needs {need} (has {dist(i, j)})')
            if k in VAL or k in ('dsr', 'vld'):
                for r in ins.wr:
                    if r in last_mfma_c:
                        i = last_mfma_c[r]
                        need = 7 if trace[i].passes == 8 else 3
                        if dist(i, j) < need:
                            P(j, f'MFMA SrcC read {r} -> write WAR needs {need} (has {dist(i, j)})')
        if k in ('valu', 'mfma', 'permlane', 'readlane', 'dsw', 'vst'):
            for r in ins.rd:
                if r in last_trans_w and dist(last_trans_w[r], j) < 1:
                    P(j, f'trans {r} -> consumer needs 1')
        if k == 'permlane' or ins.dpp:
            for r in ins.rd:
                if r in last_valu_w and dist(last_valu_w[r], j) < 2:
                    P(j, f'VALU write {r} -> permlane/dpp needs 2')
        if k == 'readlane':
            for r in ins.rd:
                if r in last_valu_w and dist(last_valu_w[r], j) < 1:
                    P(j, f'VALU write {r} -> readlane needs 1')
        if k in VAL:
            for r in ins.rd:
                if r[0] in ('s', 'vcc') and r in last_valu_sw and dist(last_valu_sw[r], j) < 2:
                    P(j, f'VALU sgpr write {r} -> VALU read needs 2')
        if k in ('dma', 'vld', 'vst'):
            for r in ins.rd:
                if r[0] == 's' and r in last_valu_sw and dist(last_valu_sw[r], j) < 5:
                    P(j, f'VALU sgpr write {r} -> VMEM read needs 5')
        if k == 'dma' and dist(last_salu_m0, j) < 1 and last_salu_m0 >= 0:
            P(j, 'm0 write -> dma needs 1')
        if k in VAL or k in ('mfma', 'dsr', 'vld'):
            for r in ins.wr:
                if r in last_store and dist(last_store[r], j) < 2:
                    P(j, f'wide store data {r} overwritten within 2')
        if k in VAL:
            for r in ins.wr:
                if r[0] in ('v', 'a'):
                    last_valu_w[r] = j
                    last_mfma_w.pop(r, None)
                    if k == 'trans':
                        last_trans_w[r] = j
                    else:
                        last_trans_w.pop(r, None)
                else:
                    last_valu_sw[r] = j
        if k == 'mfma':
            for r in ins.wr:
                last_mfma_w[r] = j
                last_valu_w.pop(r, None)
            for r in ins.srcc:
                last_mfma_c[r] = j
        if k == 'salu' and ('m0', 0) in ins.wr:
            last_salu_m0 = j
        if k == 'salu':
            for r in ins.wr:
                last_valu_sw.pop(r, None)
        if k == 'vst' and ins.wide:
            for r in ins.srcc:
                last_store[r] = j
        if k in ('dma', 'vld', 'vst'):
            vm_q.append((j, ins.wr))
            if len(vm_q) > 63:
                P(j, 'more than 63 vmem outstanding (info)')
        if k in ('dsr', 'dsw'):
            lg_q.append((j, ins.wr))
        if k == 'smem':
            lg_q.append((j, ins.wr))
            smem_out = True
    return probs


class Prog:
    def __init__(self, name):
        self.name = name
        self.items = []
        self.trace = []
        self.vm_tags = []
        self._loop_start = None

    def e(self, text, tag=None):
        for line in text.split('\n'):
            line = line.strip()
            if not line or line.startswith(';'):
                continue
            ins = Ins(line, tag)
            self.items.append(ins)
            self.trace.append(ins)
            if ins.kind in ('dma', 'vld', 'vst'):
                self.vm_tags.append(tag)

    def many(self, lst):
        for x in lst:
            if isinstance(x, tuple):
                self.e(x[0], x[1])
            else:
                self.e(x)

    def vm_after(self, tag):
        for i in range(len(self.vm_tags) - 1, -1, -1):
            if self.vm_tags[i] == tag:
                return len(self.vm_tags) - 1 - i
        raise KeyError(tag)

    def wait_vm(self, tag, extra=''):
        n = self.vm_after(tag)
        assert n <= 63, n
        self.e(f's_waitcnt vmcnt({n}) {extra}'.strip())

    def loop_begin(self):
        self._loop_start = len(self.trace)

    def loop_end(self, reps=1):
        body = self.trace[self._loop_start:]
        for _ in range(reps):
            self.trace += body
        self._loop_start = None

    def text(self):
        out = []
        for ins in self.items:
            if ins.kind == 'label':
                out.append(ins.text)
            else:
                out.append('    ' + ins.text)
        return '\n'.join(out)

    def check(self):
        return check_trace(self.trace, self.name)


def interleave(mfmas, fillers, first_gap=0, cap=None):
    out = []
    n = len(mfmas)
    nf = len(fillers)
    gaps = n - first_gap
    done = 0
    for i, m in enumerate(mfmas):
        out.append(m)
        if i >= first_gap:
            g = i - first_gap + 1
            want = (nf * g + gaps - 1) // gaps
            if cap is not None:
                want = min(want, done + cap)
            while done < want and done < nf:
                out.append(fillers[done])
                done += 1
    out += fillers[done:]
    return out


def kernel_desc(name, vgpr, accum, sgpr=102):
    return f""".amdhsa_kernel {name}
  .amdhsa_next_free_vgpr {vgpr}
  .amdhsa_next_free_sgpr {sgpr}
  .amdhsa_accum_offset {accum}
  .amdhsa_group_segment_fixed_size 0
  .amdhsa_kernarg_size 104
  .amdhsa_user_sgpr_count 2
  .amdhsa_user_sgpr_kernarg_segment_ptr 1
  .amdhsa_system_sgpr_workgroup_id_x 1
  .amdhsa_float_denorm_mode_32 3
  .amdhsa_float_denorm_mode_16_64 3
.end_amdhsa_kernel
"""
```

```python
from asmlib import *

KF_OFF = 0x0000000
VF_OFF = 0x1000000
XN_OFF = 0x2000000
AB_OFF = 0x2400000
AB_SIZE = 128 * 182 * 1024
WOF_OFF = 0x3C00000
QP_OFF = 0x4400000
STAMP_OFF = 0x8000000

KA_X, KA_CKV, KA_WQ, KA_WUK, KA_WUV, KA_WO, KA_BX, KA_W1, KA_B1, KA_W2 = [8 * i for i in range(10)]
KA_OUT, KA_DBG, KA_WS = 80, 88, 96


def srd(p, d, lo, hi, size, add=None):
    if add:
        p.e(f's_add_u32 s{d}, s{lo}, {add}')
        p.e(f's_addc_u32 s{d+1}, s{hi}, 0')
    else:
        p.e(f's_mov_b32 s{d}, s{lo}')
        p.e(f's_mov_b32 s{d+1}, s{hi}')
    p.e(f's_mov_b32 s{d+2}, {size}')
    p.e(f's_mov_b32 s{d+3}, 0x20000')


def stamp_code(p, slot, kidx, swg, sws_lo, tmp_s, vt0, vt1, nslots=8):
    t = tmp_s
    p.e(f's_memrealtime s[{t+4}:{t+5}]')
    p.e(f's_add_u32 s{t}, s{sws_lo}, {STAMP_OFF}')
    p.e(f's_addc_u32 s{t+1}, s{sws_lo+1}, 0')
    p.e(f's_mov_b32 s{t+2}, 0x100000')
    p.e(f's_mov_b32 s{t+3}, 0x20000')
    p.e(f's_lshl_b32 s{t+6}, s{swg}, {(nslots*4).bit_length()-1}')
    p.e(f's_add_u32 s{t+6}, s{t+6}, {(kidx*256*nslots+slot)*4}')
    p.e('s_waitcnt lgkmcnt(0)')
    p.e(f'v_mov_b32 v{vt0}, s{t+4}')
    p.e(f'v_mov_b32 v{vt1}, 0')
    p.e(f'buffer_store_dword v{vt0}, v{vt1}, s[{t}:{t+3}], s{t+6} offen', tag='stamp')


def stamps_flush(p, sbase, n, kidx, swg, sws_lo, tmp_s, vt0, vt1, swave=None, nslots=64):
    t = tmp_s
    p.e('s_waitcnt lgkmcnt(0)')
    p.e(f's_add_u32 s{t}, s{sws_lo}, {STAMP_OFF + 0x400000}')
    p.e(f's_addc_u32 s{t+1}, s{sws_lo+1}, 0')
    p.e(f's_mov_b32 s{t+2}, 0x1000000')
    p.e(f's_mov_b32 s{t+3}, 0x20000')
    p.e(f's_lshl_b32 s{t+6}, s{swg}, 3')
    p.e(f's_add_u32 s{t+6}, s{t+6}, s{swave}')
    p.e(f's_add_u32 s{t+6}, s{t+6}, {kidx*256*8}')
    p.e(f's_lshl_b32 s{t+6}, s{t+6}, {(nslots*4).bit_length()-1}')
    p.e(f'v_mov_b32 v{vt1}, 0')
    for i in range(n):
        p.e(f'v_mov_b32 v{vt0}, s{sbase+2*i}')
        p.e(f'buffer_store_dword v{vt0}, v{vt1}, s[{t}:{t+3}], s{t+6} offen offset:{4*i}', tag='stamp')
```

```python
from common import *

SLOT = 49152
NSLOT = 3
KSCALE = 0x3e0293ee

S_WAVE = 3
S_C = 20
S_W = 24
S_O = 28
S_X = 32
S_XN = 36
S_WW_LDS, S_WW_G, S_WA_LDS, S_WA_G, S_WB_LDS, S_WB_G = 40, 41, 42, 43, 44, 45
S_T = 46
S_OG = 47
S_T2 = 48
S_KS = 49
S_16K, S_32K = 50, 51
S_WS = 12
S_TMP8 = 4
S_ST = 72
S_RB = 52
S_RA = 54
S_RW = 62
S_H, S_RBK, S_TY, S_CH, S_ROT = 14, 15, 16, 17, 18

V_ACC1 = 0
V_ACC2 = 128
V_ASET = 192
V_AADDR = 224
V_WADDR = 228
V_OFFW = 230
V_OFFA = 231
V_LANE16 = 233
V_T = 234
V_XOFF, V_XOFF3, V_XNOFF, V_XNOFF3, V_M3 = 240, 241, 242, 243, 244
V_LN = 128


def ln_fillers():
    raw = V_LN
    xf = V_LN + 12
    s0, s1, q0, q1, q3, t0, t1, mean, mb, rinv = [V_LN + 36 + i for i in range(10)]
    dv = V_LN + 46
    L = []
    for j in range(12):
        L.append(f'v_lshlrev_b32 v{xf+2*j}, 16, v{raw+j}')
        L.append(f'v_and_b32 v{xf+2*j+1}, 0xffff0000, v{raw+j}')
    L.append(f'v_add_f32 v{s0}, v{xf}, v{xf+1}')
    L.append(f'v_add_f32 v{s1}, v{xf+2}, v{xf+3}')
    for j in range(4, 24, 2):
        L.append(f'v_add_f32 v{s0}, v{s0}, v{xf+j}')
        L.append(f'v_add_f32 v{s1}, v{s1}, v{xf+j+1}')
    L.append(f'v_add_f32 v{s0}, v{s0}, v{s1}')

    def red32(r, tmp):
        o = []
        for m in ('quad_perm:[1,0,3,2]', 'quad_perm:[2,3,0,1]', 'row_half_mirror', 'row_mirror'):
            o.append('s_nop 1')
            o.append(f'v_add_f32_dpp v{r}, v{r}, v{r} {m} row_mask:0xf bank_mask:0xf')
        o.append(f'v_mov_b32 v{tmp}, v{r}')
        o.append('s_nop 1')
        o.append(f'v_permlane16_swap_b32 v{r}, v{tmp}')
        o.append(f'v_add_f32 v{r}, v{r}, v{tmp}')
        return o
    L += red32(s0, t0)
    import struct
    f2u = lambda f: struct.unpack('<I', struct.pack('<f', f))[0]
    inv640 = hex(f2u(1.0 / 640.0))
    L.append(f'v_mul_f32 v{mean}, {inv640}, v{s0}')
    first = {q0: True, q1: True, q3: True}
    for j in range(24):
        acc = q3 if j >= 16 else (q0 if j % 2 == 0 else q1)
        d = dv + (j % 4)
        L.append(f'v_sub_f32 v{d}, v{xf+j}, v{mean}')
        if first[acc]:
            L.append(f'v_mul_f32 v{acc}, v{d}, v{d}')
            first[acc] = False
        else:
            L.append(f'v_fmac_f32 v{acc}, v{d}, v{d}')
    L.append(f'v_add_f32 v{q0}, v{q0}, v{q1}')
    L.append(f'v_fmac_f32 v{q0}, v{q3}, v{V_M3}')
    L += red32(q0, t0)
    L.append(f'v_mul_f32 v{q0}, {inv640}, v{q0}')

    def bf16r(dst, src):
        return [f'v_cvt_pk_bf16_f32 v{dst}, v{src}, v{src}', f'v_and_b32 v{dst}, 0xffff0000, v{dst}']
    L += bf16r(mb, mean)
    L += bf16r(q0, q0)
    L.append(f'v_add_f32 v{q0}, {hex(f2u(1e-5))}, v{q0}')
    L += bf16r(q0, q0)
    L.append(f'v_sqrt_f32 v{q0}, v{q0}')
    L.append('s_nop 0')
    L += bf16r(q0, q0)
    L.append(f'v_rcp_f32 v{rinv}, v{q0}')
    for j in range(12):
        a, b = xf + 2 * j, xf + 2 * j + 1
        L.append(f'v_sub_f32 v{a}, v{a}, v{mb}')
        L.append(f'v_sub_f32 v{b}, v{b}, v{mb}')
        L.append(f'v_cvt_pk_bf16_f32 v{t1}, v{a}, v{b}')
        L.append(f'v_lshlrev_b32 v{a}, 16, v{t1}')
        L.append(f'v_and_b32 v{b}, 0xffff0000, v{t1}')
        L.append(f'v_mul_f32 v{a}, v{a}, v{rinv}')
        L.append(f'v_mul_f32 v{b}, v{b}, v{rinv}')
        L.append(f'v_cvt_pk_bf16_f32 v{raw+j}, v{a}, v{b}')
    L.append((f'buffer_store_dwordx4 v[{raw}:{raw+3}], v{V_XNOFF}, s[{S_XN}:{S_XN+3}], 0 offen', 'lnst'))
    L.append((f'buffer_store_dwordx4 v[{raw+4}:{raw+7}], v{V_XNOFF}, s[{S_XN}:{S_XN+3}], s{S_16K} offen', 'lnst'))
    L.append((f'buffer_store_dwordx4 v[{raw+8}:{raw+11}], v{V_XNOFF3}, s[{S_XN}:{S_XN+3}], s{S_32K} offen', 'lnst'))
    return L


def dma_stage(s):
    slot = (s % NSLOT) * SLOT
    G = []
    tag = f'st{s}'
    if s < 8:
        for i in range(8):
            G.append([f's_add_u32 m0, s{S_WW_LDS}, {slot + i*1024}',
                      f's_add_u32 s{S_T}, s{S_RW+s}, {(4*i) * 8192}',
                      (f'buffer_load_dwordx4 v{V_OFFW}, s[{S_W}:{S_W+3}], s{S_T} offen lds', tag)])
        for idx in range(4):
            G.append([f's_add_u32 m0, s{S_WA_LDS}, {slot + idx*1024}',
                      f's_add_u32 s{S_T}, s{S_RA+s}, {8*idx*1024}',
                      (f'buffer_load_dwordx4 v{V_OFFA + (idx & 1)}, s[{S_C}:{S_C+3}], s{S_T} offen lds', tag)])
    else:
        rt = 4 + (s - 8)
        for kc in range(2):
            for idx in range(4):
                G.append([f's_add_u32 m0, s{S_WB_LDS}, {slot + kc*4096 + idx*1024}',
                          f's_add_u32 s{S_T}, s{S_RB+kc}, {(rt*32 + 8*idx)*1024}',
                          (f'buffer_load_dwordx4 v{V_OFFA + (idx & 1)}, s[{S_C}:{S_C+3}], s{S_T} offen lds', tag)])
    return G


def step_reads(n):
    aset = V_ASET + (n & 1) * 16
    R = []
    if n < 32:
        ks4 = n % 4
        for dt2 in range(2):
            for half2 in range(2):
                a = n * 8 + dt2 * 4 + half2 * 2
                R.append(f'ds_read_b64_tr_b16 a[{a}:{a+1}], v{V_WADDR+dt2} offset:{(16*ks4 + 4*half2) * 256}')
        for rt in range(4):
            R.append(f'ds_read_b128 v[{aset+rt*4}:{aset+rt*4+3}], v{V_AADDR+ks4} offset:{32768 + rt*4096}')
    else:
        kc = (n - 32) % 8
        for ks4 in range(4):
            R.append(f'ds_read_b128 v[{aset+ks4*4}:{aset+ks4*4+3}], v{V_AADDR+ks4} offset:{kc*4096}')
    return R


def step_mfmas(n, isV):
    aset = V_ASET + (n & 1) * 16
    M = []

    def mf(acc, w, a, first):
        c = '0' if first else f'v[{acc}:{acc+15}]'
        W = f'a[{w}:{w+3}]'
        A = f'v[{a}:{a+3}]'
        if isV:
            return f'v_mfma_f32_32x32x16_bf16 v[{acc}:{acc+15}], {A}, {W}, {c}'
        return f'v_mfma_f32_32x32x16_bf16 v[{acc}:{acc+15}], {W}, {A}, {c}'
    if n < 32:
        for rt in range(4):
            for dt2 in range(2):
                M.append(mf(V_ACC1 + (rt * 2 + dt2) * 16, n * 8 + dt2 * 4, aset + rt * 4, n == 0))
    else:
        g = n - 32
        kc = g % 8
        rti = g // 8
        for ks4 in range(4):
            for dt2 in range(2):
                M.append(mf(V_ACC2 + (rti & 1) * 32 + dt2 * 16, (kc * 4 + ks4) * 8 + dt2 * 4, aset + ks4 * 4,
                            kc == 0 and ks4 == 0))
    return M


def drain_tile(acc, rt, dt2, isV, stmod):
    L = []
    if not isV:
        for r in range(16):
            L.append(f'v_mul_f32 v{acc+r}, s{S_KS}, v{acc+r}')
    for t in range(2):
        for i in range(4):
            L.append(f'v_cvt_pk_bf16_f32 v{acc+8*t+i}, v{acc+8*t+2*i}, v{acc+8*t+2*i+1}')
    L.append(f's_add_u32 s{S_T2}, s{S_OG}, {rt*8192 + dt2*2048}')
    for t in range(2):
        L.append((f'buffer_store_dwordx4 v[{acc+8*t}:{acc+8*t+3}], v{V_LANE16}, s[{S_O}:{S_O+3}], s{S_T2} offen offset:{t*1024}{stmod}', 'out'))
    return L


def gen_k1(stamps=False, stmod='', rot=True):
    name = 'k1_kernel'
    p = Prog(name)
    p.e(f'{name}:')
    p.e('s_cmp_ge_u32 s2, 256')
    p.e('s_cbranch_scc1 K1_END')
    p.e(f's_load_dwordx2 s[4:5], s[0:1], {KA_X}')
    p.e(f's_load_dwordx2 s[6:7], s[0:1], {KA_CKV}')
    p.e(f's_load_dwordx4 s[8:11], s[0:1], {KA_WUK}')
    p.e(f's_load_dwordx2 s[{S_WS}:{S_WS+1}], s[0:1], {KA_WS}')
    T = V_T
    if stamps: p.e(f's_memtime s[{S_ST}:{S_ST+1}]')
    p.e(f'v_lshrrev_b32 v{T}, 6, v0')
    p.e(f'v_and_b32 v{T+1}, 63, v0')
    p.e(f'v_readfirstlane_b32 s{S_WAVE}, v{T}')
    lane = T + 1
    p.e(f'v_lshlrev_b32 v{V_LANE16}, 4, v{lane}')
    p.e(f'v_lshrrev_b32 v{T+2}, 4, v{lane}')
    p.e(f'v_lshlrev_b32 v{T+3}, 2, v{T+2}')
    p.e(f'v_and_b32 v{T+4}, 15, v{lane}')
    p.e(f'v_xor_b32 v{T+3}, v{T+3}, v{T+4}')
    p.e(f'v_lshlrev_b32 v{T+3}, 4, v{T+3}')
    p.e(f'v_lshl_add_u32 v{V_OFFW}, v{T+2}, 13, v{T+3}')
    p.e(f'v_and_b32 v{T+3}, 7, v{lane}')
    p.e(f'v_xor_b32 v{T+3}, v{T+3}, v{T+2}')
    p.e(f'v_lshlrev_b32 v{T+3}, 4, v{T+3}')
    p.e(f'v_lshrrev_b32 v{T+4}, 3, v{lane}')
    p.e(f'v_lshl_add_u32 v{V_OFFA}, v{T+4}, 10, v{T+3}')
    p.e(f'v_xor_b32 v{V_OFFA+1}, 64, v{V_OFFA}')
    p.e(f's_and_b32 s{S_H}, s2, 31')
    p.e(f's_lshr_b32 s{S_RBK}, s2, 5')
    p.e(f's_lshr_b32 s{S_TY}, s{S_WAVE}, 1')
    p.e(f's_and_b32 s{S_CH}, s{S_WAVE}, 1')
    if rot:
        p.e(f's_lshr_b32 s{S_ROT}, s{S_H}, 3')
        p.e(f's_lshl_b32 s{S_ROT}, s{S_ROT}, 1')
        p.e(f's_add_u32 s{S_ROT}, s{S_ROT}, s{S_RBK}')
    else:
        p.e(f's_mov_b32 s{S_ROT}, 0')
    p.e(f's_lshl_b32 s{S_WW_LDS}, s{S_WAVE}, 13')
    p.e(f's_lshl_b32 s{S_WW_G}, s{S_CH}, 18')
    p.e(f's_lshl_b32 s{S_T}, s{S_H}, 8')
    p.e(f's_add_u32 s{S_WW_G}, s{S_WW_G}, s{S_T}')
    p.e(f's_lshl_b32 s{S_WA_LDS}, s{S_WAVE}, 12')
    p.e(f's_add_u32 s{S_WA_LDS}, s{S_WA_LDS}, 32768')
    p.e(f's_lshl_b32 s{S_WB_G}, s{S_RBK}, 18')
    p.e(f's_lshl_b32 s{S_T}, s{S_WAVE}, 15')
    p.e(f's_add_u32 s{S_WA_G}, s{S_WB_G}, s{S_T}')
    p.e(f's_lshl_b32 s{S_WB_LDS}, s{S_WAVE}, 13')
    for st in range(8):
        p.e(f's_add_u32 s{S_T}, s{S_ROT}, {st}')
        p.e(f's_and_b32 s{S_T}, s{S_T}, 7')
        p.e(f's_lshl_b32 s{S_T2}, s{S_T}, 19')
        p.e(f's_add_u32 s{S_RW+st}, s{S_WW_G}, s{S_T2}')
        p.e(f's_lshl_b32 s{S_T2}, s{S_T}, 7')
        p.e(f's_add_u32 s{S_RA+st}, s{S_WA_G}, s{S_T2}')
    for kc in range(2):
        p.e(f's_lshl_b32 s{S_T}, s{S_WAVE}, 1')
        p.e(f's_add_u32 s{S_T}, s{S_T}, s{S_ROT}')
        p.e(f's_add_u32 s{S_T}, s{S_T}, {kc}')
        p.e(f's_and_b32 s{S_T}, s{S_T}, 7')
        p.e(f's_lshl_b32 s{S_T}, s{S_T}, 7')
        p.e(f's_add_u32 s{S_RB+kc}, s{S_WB_G}, s{S_T}')
    p.e(f's_lshl_b32 s{S_OG}, s{S_H}, 19')
    p.e(f's_lshl_b32 s{S_T}, s{S_RBK}, 16')
    p.e(f's_add_u32 s{S_OG}, s{S_OG}, s{S_T}')
    p.e(f's_lshl_b32 s{S_T}, s{S_CH}, 12')
    p.e(f's_add_u32 s{S_OG}, s{S_OG}, s{S_T}')
    p.e(f's_mov_b32 s{S_KS}, {hex(KSCALE)}')
    p.e(f's_mov_b32 s{S_16K}, 16384')
    p.e(f's_mov_b32 s{S_32K}, 32768')
    p.e('s_waitcnt lgkmcnt(0)')
    srd(p, S_C, 6, 7, 2097152)
    p.e(f's_cmp_eq_u32 s{S_TY}, 0')
    p.e(f's_cselect_b32 s{S_W}, s8, s10')
    p.e(f's_cselect_b32 s{S_W+1}, s9, s11')
    p.e(f's_mov_b32 s{S_W+2}, 4194304')
    p.e(f's_mov_b32 s{S_W+3}, 0x20000')
    for s in range(3):
        for g in dma_stage(s):
            p.many(g)
    p.e(f's_lshl_b32 s{S_T}, s{S_TY}, 24')
    p.e(f's_add_u32 s{S_O}, s{S_WS}, s{S_T}')
    p.e(f's_addc_u32 s{S_O+1}, s{S_WS+1}, 0')
    p.e(f's_mov_b32 s{S_O+2}, 0x1000000')
    p.e(f's_mov_b32 s{S_O+3}, 0x20000')
    srd(p, S_X, 4, 5, 2621440)
    srd(p, S_XN, S_WS, S_WS + 1, 2621440, XN_OFF)
    if stamps:
        stamp_code(p, 0, 0, 2, S_WS, S_TMP8, T + 4, T + 5)
    p.e(f's_lshl_b32 s{S_T}, s2, 3')
    p.e(f's_lshl_b32 s{S_T2}, s{S_WAVE}, 1')
    p.e(f's_add_u32 s{S_T}, s{S_T}, s{S_T2}')
    p.e(f'v_lshrrev_b32 v{T+2}, 5, v{lane}')
    p.e(f'v_add_u32 v{T+3}, s{S_T}, v{T+2}')
    p.e(f'v_and_b32 v{T+4}, 31, v{lane}')
    p.e(f's_movk_i32 s{S_T2}, 1280')
    p.e(f'v_mul_lo_u32 v{V_XOFF}, v{T+3}, s{S_T2}')
    p.e(f'v_lshl_add_u32 v{V_XOFF}, v{T+4}, 4, v{V_XOFF}')
    p.e(f'v_cmp_gt_u32 vcc, 16, v{T+4}')
    p.e(f'v_mov_b32 v{T+5}, 0x40000000')
    p.e(f'v_mov_b32 v{V_M3}, 0')
    p.e(f'v_cndmask_b32 v{V_XOFF3}, v{T+5}, v{V_XOFF}, vcc')
    p.e(f'v_cndmask_b32 v{V_M3}, v{V_M3}, 1.0, vcc')
    p.e(f'buffer_load_dwordx4 v[{V_LN}:{V_LN+3}], v{V_XOFF}, s[{S_X}:{S_X+3}], 0 offen', 'lnld')
    p.e(f'buffer_load_dwordx4 v[{V_LN+4}:{V_LN+7}], v{V_XOFF}, s[{S_X}:{S_X+3}], 0 offen offset:512', 'lnld')
    p.e(f'buffer_load_dwordx4 v[{V_LN+8}:{V_LN+11}], v{V_XOFF3}, s[{S_X}:{S_X+3}], 0 offen offset:1024', 'lnld')
    p.e(f'v_lshrrev_b32 v{V_XNOFF}, 5, v{T+3}')
    p.e(f's_mov_b32 s{S_T2}, 40960')
    p.e(f'v_mul_lo_u32 v{V_XNOFF}, v{V_XNOFF}, s{S_T2}')
    p.e(f'v_and_b32 v{T+3}, 31, v{T+3}')
    p.e(f'v_lshl_add_u32 v{V_XNOFF}, v{T+3}, 4, v{V_XNOFF}')
    p.e(f'v_lshrrev_b32 v{T+3}, 1, v{T+4}')
    p.e(f'v_lshl_add_u32 v{V_XNOFF}, v{T+3}, 10, v{V_XNOFF}')
    p.e(f'v_and_b32 v{T+3}, 1, v{T+4}')
    p.e(f'v_lshl_add_u32 v{V_XNOFF}, v{T+3}, 9, v{V_XNOFF}')
    p.e(f'v_cndmask_b32 v{V_XNOFF3}, v{T+5}, v{V_XNOFF}, vcc')
    p.e(f'v_bfe_u32 v{T+3}, v{lane}, 1, 3')
    p.e(f'v_xor_b32 v{T+3}, v{T+3}, v{T+2}')
    p.e(f'v_lshlrev_b32 v{T+3}, 4, v{T+3}')
    p.e(f'v_lshl_add_u32 v{V_AADDR}, v{T+4}, 7, v{T+3}')
    for k in range(1, 4):
        p.e(f'v_xor_b32 v{V_AADDR+k}, {k*32}, v{V_AADDR}')
    p.e(f'v_bfe_u32 v{T+3}, v{lane}, 2, 2')
    p.e(f'v_lshl_add_u32 v{T+4}, v{T+2}, 3, v{T+3}')
    p.e(f'v_lshlrev_b32 v{T+4}, 8, v{T+4}')
    p.e(f's_lshl_b32 s{S_T}, s{S_CH}, 1')
    p.e(f'v_xor_b32 v{T+3}, s{S_T}, v{T+3}')
    p.e(f'v_lshl_add_u32 v{T+4}, v{T+3}, 6, v{T+4}')
    p.e(f'v_bfe_u32 v{T+3}, v{lane}, 4, 1')
    p.e(f'v_lshl_add_u32 v{T+4}, v{T+3}, 5, v{T+4}')
    p.e(f'v_and_b32 v{T+3}, 3, v{lane}')
    p.e(f'v_lshl_add_u32 v{T+4}, v{T+3}, 3, v{T+4}')
    p.e(f's_lshl_b32 s{S_T}, s{S_TY}, 14')
    p.e(f'v_add_u32 v{V_WADDR}, s{S_T}, v{T+4}')
    p.e(f'v_xor_b32 v{V_WADDR+1}, 64, v{V_WADDR}')
    p.e(f's_cmp_eq_u32 s{S_TY}, 1')
    p.e('s_cbranch_scc1 K1_VWAVE')

    pre_items = list(p.items)
    pre_trace = list(p.trace)
    pre_tags = list(p.vm_tags)
    texts = [p.text()]
    probs = []
    for isV in (False, True):
        q = Prog(name + ('_V' if isV else '_K'))
        q.trace = list(pre_trace)
        q.vm_tags = list(pre_tags)
        if isV:
            q.e('K1_VWAVE:')
        ln = ln_fillers()
        ln_pos = 0
        LN_START, LN_END = 12, 31
        q.wait_vm('st0')
        q.e('s_barrier')
        if stamps: q.e(f's_memtime s[{S_ST+2}:{S_ST+3}]')
        q.many(step_reads(0))
        pend_dma = []
        drains = []
        for n in range(64):
            nxt = n + 1
            def stage_of(m):
                return m // 4 if m < 32 else 8 + (m - 32) // 8
            newstage = nxt < 64 and stage_of(nxt) != stage_of(n)
            if newstage:
                s = stage_of(nxt)
                q.wait_vm(f'st{s}', 'lgkmcnt(0)')
                q.e('s_barrier')
                if stamps: q.e(f's_memtime s[{S_ST+2+2*s}:{S_ST+3+2*s}]')
                if s + 2 <= 11:
                    pend_dma += dma_stage(s + 2)
            else:
                q.e('s_waitcnt lgkmcnt(0)')
            if n == LN_START:
                q.wait_vm('lnld') if q.vm_after('lnld') < 63 and False else None
            fill = []
            if nxt < 64:
                fill += step_reads(nxt)
            ng = 3 if n < 32 else 1
            if n >= 27:
                ng = 4
            for _ in range(min(ng, len(pend_dma))):
                fill += pend_dma.pop(0)
            nn = n + 2
            if nn < 64 and stage_of(nn) != stage_of(nxt):
                s = stage_of(nn)
                delta = SLOT if (s % NSLOT) != 0 else -(NSLOT - 1) * SLOT
                d = hex(delta & 0xffffffff)
                for k in range(4):
                    fill.append(f'v_add_u32 v{V_AADDR+k}, {d}, v{V_AADDR+k}')
                if s < 8:
                    for k in range(2):
                        fill.append(f'v_add_u32 v{V_WADDR+k}, {d}, v{V_WADDR+k}')
            if LN_START <= n < LN_END:
                want = (len(ln) * (n - LN_START + 1) + (LN_END - LN_START) - 1) // (LN_END - LN_START)
                fill += ln[ln_pos:want]
                ln_pos = want
            if n == 32:
                for rt in range(4):
                    for dt2 in range(2):
                        drains.append(drain_tile(V_ACC1 + (rt * 2 + dt2) * 16, rt, dt2, isV, stmod))
            if n in (41, 49, 57):
                rti = (n - 33) // 8 - 1 + 0
                rti = (n - 41) // 8
                for dt2 in range(2):
                    drains.append(drain_tile(V_ACC2 + (rti & 1) * 32 + dt2 * 16, 4 + rti, dt2, isV, stmod))
            if n >= 32 and drains:
                fill += drains.pop(0)
            q.many(interleave(step_mfmas(n, isV), fill))
        assert not pend_dma and not drains and ln_pos == len(ln)
        q.e('s_nop 11')
        for dt2 in range(2):
            q.many(drain_tile(V_ACC2 + 32 + dt2 * 16, 7, dt2, isV, stmod))
        if stamps:
            q.e(f's_memtime s[{S_ST+26}:{S_ST+27}]')
            q.e('s_waitcnt vmcnt(0)')
            q.e(f's_memtime s[{S_ST+28}:{S_ST+29}]')
            stamp_code(q, 1, 0, 2, S_WS, S_TMP8, T + 4, T + 5)
            stamps_flush(q, S_ST, 15, 0, 2, S_WS, S_TMP8, T + 4, T + 5, S_WAVE)
        if not isV:
            q.e('s_endpgm')
        else:
            q.e('K1_END:')
            q.e('s_endpgm')
        probs += q.check()
        texts.append(q.text())
    hdr = f'.globl {name}\n.p2align 8\n.type {name},@function\n'
    launch = f'; @launch kernel={name} grid=(256,1,1) block=(256,1,1) lds={SLOT*NSLOT}'
    return launch, hdr + '\n'.join(texts), kernel_desc(name, 512, 256), probs


if __name__ == '__main__':
    import struct, math
    print(hex(struct.unpack('<I', struct.pack('<f', math.log2(math.e) / math.sqrt(128)))[0]))
    l, t, d, probs = gen_k1()
    print(len(t.split('\n')), 'lines')
    for x in probs[:40]:
        print(x)
```

```python
from common import *
import struct

f2u = lambda f: struct.unpack('<I', struct.pack('<f', f))[0]

SLOT = 32768
NSLOT = 4
PARK = SLOT * NSLOT
LDS_BYTES = PARK + 32768
THR = 16384.0

S_WAVE = 3
S_PWQ, S_PW1, S_PB1, S_PWO, S_PW2, S_WS = 4, 6, 8, 10, 12, 14
S_H, S_PI, S_QBA, S_QBB = 16, 17, 18, 19
S_KV = 20
S_WQ = 24
S_W1 = 28
S_XN = 32
S_CTX = 36
S_ACT = 40
S_B1 = 44
S_RL = 48
S_RO = 52
S_SLOT = 56
S_T, S_T2 = 57, 58
S_CNT = 59
S_THR, S_FLOOR = 60, 61
S_RET = 62
S_MSK = 64
S_GWQ, S_GW1, S_GXA, S_GXB, S_GK, S_GV = 72, 73, 74, 75, 76, 77
S_HW = 78
S_L0, S_L1, S_L2, S_L3 = 79, 80, 81, 82
S_BLK = 83
S_QB = 84
S_CTXO = 85
S_TMP8 = 88
S_LOG2E = 86
S_ST = 96

V_O = 0
V_Q = 64
V_S = 96
V_CI = 128
V_P = 144
V_K = 160
V_V = 192
V_E = 224
V_TS = 230
V_L = 231
V_AD = 232
V_Z = 233
V_NINF = 234
V_LANE16 = 235
V_CTXOFF = 236
V_ACTOFF = 237
V_Z0 = 238
V_T = 240
V_QBACC = 0
V_QAACC = 64
V_H = 128
V_WF = 192
V_XF = 216
V_AWQ = 246
V_AW1 = 250
V_AXN = 252


def cost(x):
    t = x[0] if isinstance(x, tuple) else x
    op = t.split()[0]
    if op in TRANS:
        return 2
    return 1


def pack_gaps(mfmas, pinned, stream, budget=6):
    out = []
    pos = 0
    for i, m in enumerate(mfmas):
        used = 0
        if isinstance(m, list):
            out += m
            used += len(m) - 1
        else:
            out.append(m)
        for x in pinned[i]:
            out.append(x)
            used += cost(x)
        while pos < len(stream) and used + cost(stream[pos]) <= budget:
            out.append(stream[pos])
            used += cost(stream[pos])
            pos += 1
    out += stream[pos:]
    return out


def softmax_stream(par, masked):
    S = V_S + par * 16
    P = V_P + par * 8
    L = []
    if masked:
        pass
    pend = []
    for i in range(8):
        ea = V_E + (i % 3) * 2
        eb = ea + 1
        if masked:
            for r in (2 * i, 2 * i + 1):
                c = (r & 3) + 8 * (r >> 2)
                m = S_MSK + 2 * (r % 4)
                L.append(f'v_cmp_gt_i32_e64 s[{m}:{m+1}], {c}, v{V_Z}')
            L += pend[:1]
            pend = pend[1:]
            L.append('s_nop 0') if not pend and i == 0 else None
            for r in (2 * i, 2 * i + 1):
                m = S_MSK + 2 * (r % 4)
                L.append(f'v_cndmask_b32_e64 v{S+r}, v{S+r}, v{V_NINF}, s[{m}:{m+1}]')
        L.append(f'v_exp_f32 v{ea}, v{S+2*i}')
        L += pend
        pend = []
        L.append(f'v_exp_f32 v{eb}, v{S+2*i+1}')
        if i == 0:
            L.append(f'v_add_f32 v{V_TS}, 0, v{ea}')
        else:
            L.append(f'v_add_f32 v{V_TS}, v{V_TS}, v{ea}')
        pend = [f'v_add_f32 v{V_TS}, v{V_TS}, v{eb}', f'v_cvt_pk_bf16_f32 v{P+i}, v{ea}, v{eb}']
    L += pend
    if masked:
        L.append(f'v_subrev_u32 v{V_Z}, 32, v{V_Z}')
    return L


def iteration(par, masked, tile_in_slot, site, extra_pre=None, extra_stream=None):
    Sn = V_S + (1 - par) * 16
    Pp = V_P + (1 - par) * 8
    mf = []
    pinned = []
    for ks in range(8):
        c = f'v[{V_CI}:{V_CI+15}]' if ks == 0 else f'v[{Sn}:{Sn+15}]'
        m = f'v_mfma_f32_32x32x16_bf16 v[{Sn}:{Sn+15}], v[{V_K+4*ks}:{V_K+4*ks+3}], v[{V_Q+4*ks}:{V_Q+4*ks+3}], {c}'
        if ks == 0:
            m = (extra_pre or []) + ['s_waitcnt lgkmcnt(8)', m]
        mf.append(m)
        pinned.append([f'ds_read_b128 v[{V_K+4*ks}:{V_K+4*ks+3}], v{V_AD} offset:{tile_in_slot*8192 + ks*1024}'])
    for t in range(2):
        for dt in range(4):
            f = dt * 2 + t
            o = V_O + 16 * dt
            m = f'v_mfma_f32_32x32x16_bf16 v[{o}:{o+15}], v[{V_V+4*f}:{V_V+4*f+3}], v[{Pp+4*t}:{Pp+4*t+3}], v[{o}:{o+15}]'
            if t == 0 and dt == 0:
                m = ['s_waitcnt lgkmcnt(8)', m]
            mf.append(m)
            pinned.append([f'ds_read_b128 v[{V_V+4*f}:{V_V+4*f+3}], v{V_AD} offset:{16384 + tile_in_slot*8192 + f*1024}'])
    stream = softmax_stream(par, masked)
    stream.append(f'v_cmp_lt_f32 vcc, s{S_THR}, v{V_TS}')
    if extra_stream:
        stream += extra_stream
    out = pack_gaps(mf, pinned, stream)
    out.append(f's_cbranch_vccnz K2_STUB{site}')
    out.append(f'K2_RET{site}:')
    out.append(f'v_add_f32 v{V_L}, v{V_L}, v{V_TS}')
    return out


def fixup(par):
    S = V_S + par * 16
    Sn = V_S + (1 - par) * 16
    P = V_P + par * 8
    mx, t, d, sc = V_T, V_T + 1, V_T + 2, V_T + 3
    L = [f'K2_FIX{par}:', 's_nop 15']
    L.append(f'v_max3_f32 v{mx}, v{S}, v{S+1}, v{S+2}')
    for r in range(3, 15, 2):
        L.append(f'v_max3_f32 v{mx}, v{mx}, v{S+r}, v{S+r+1}')
    L.append(f'v_max_f32 v{mx}, v{mx}, v{S+15}')
    L.append(f'v_mov_b32 v{t}, v{mx}')
    L.append('s_nop 1')
    L.append(f'v_permlane32_swap_b32 v{mx}, v{t}')
    L.append(f'v_max_f32 v{mx}, v{mx}, v{t}')
    L.append(f'v_max_f32 v{d}, s{S_FLOOR}, v{mx}')
    L.append(f'v_max_f32 v{sc}, 0, v{d}')
    L.append(f'v_sub_f32 v{sc}, 0, v{sc}')
    L.append(f'v_exp_f32 v{sc}, v{sc}')
    for r in range(16):
        L.append(f'v_sub_f32 v{S+r}, v{S+r}, v{d}')
    for r in range(64):
        L.append(f'v_mul_f32 v{V_O+r}, v{V_O+r}, v{sc}')
    L.append(f'v_mul_f32 v{V_L}, v{V_L}, v{sc}')
    for r in range(16):
        L.append(f'v_sub_f32 v{Sn+r}, v{Sn+r}, v{d}')
        L.append(f'v_sub_f32 v{V_CI+r}, v{V_CI+r}, v{d}')
    L += softmax_stream(par, False)
    L.append(f's_mov_b32 s{S_THR}, {hex(f2u(THR))}')
    L.append(f's_mov_b32 s{S_FLOOR}, 0')
    L.append(f's_setpc_b64 s[{S_RET}:{S_RET+1}]')
    return L


def proj_reads_w(f, ks2):
    w = V_WF + 4 * f
    R = []
    for h2 in range(2):
        if f < 4:
            R.append(f'ds_read_b64_tr_b16 v[{w+2*h2}:{w+2*h2+1}], v{V_AWQ+f} offset:{(16*ks2 + 4*h2)*256}')
        else:
            R.append(f'ds_read_b64_tr_b16 v[{w+2*h2}:{w+2*h2+1}], v{V_AW1+f-4} offset:{8192 + (16*ks2 + 4*h2)*128}')
    return R


def proj_reads_x(ks2):
    xs = V_XF + ks2 * 8
    return [f'ds_read_b128 v[{xs+4*b}:{xs+4*b+3}], v{V_AXN} offset:{16384 + (b*8 + ks2)*1024}' for b in range(2)]


def proj_step(ks2, first, next_reads, extra=None):
    xs = V_XF + ks2 * 8
    out = []
    extra = list(extra or [])
    if next_reads:
        out_x = proj_reads_x(1 - ks2)
    for f in range(6):
        w = V_WF + 4 * f
        if f % 2 == 0:
            if next_reads:
                n = 2 * (5 - (f + 1)) + (2 if f > 0 else 0) + 2 * f
            else:
                n = 2 * (5 - (f + 1))
            if f == 0:
                n = min(n, 8)
            out.append(f's_waitcnt lgkmcnt({n})')
        for b in range(2):
            if f < 4:
                acc = (V_QAACC if b == 0 else V_QBACC) + 16 * f
                c = '0' if first else f'v[{acc}:{acc+15}]'
            else:
                acc = V_H + (b * 2 + f - 4) * 16
                c = f'v[{acc}:{acc+15}]'
            out.append(f'v_mfma_f32_32x32x16_bf16 v[{acc}:{acc+15}], v[{w}:{w+3}], v[{xs+4*b}:{xs+4*b+3}], {c}')
            if next_reads and f == 0 and b == 0:
                out += out_x
            for _ in range(2):
                if extra:
                    out.append(extra.pop(0))
        if next_reads:
            out += proj_reads_w(f, 1 - ks2)
    out += extra
    return out


def mish_tile(acc):
    L = []
    u, n, dd = V_T, V_T + 2, V_T + 4
    for i in range(8):
        for k in range(2):
            L.append(f'v_min_f32 v{u+k}, 0x41f00000, v{acc+2*i+k}')
        for k in range(2):
            L.append(f'v_mul_f32 v{u+k}, s{S_LOG2E}, v{u+k}')
        for k in range(2):
            L.append(f'v_exp_f32 v{u+k}, v{u+k}')
        for k in range(2):
            L.append(f'v_add_f32 v{n+k}, 2.0, v{u+k}')
        for k in range(2):
            L.append(f'v_mul_f32 v{n+k}, v{n+k}, v{u+k}')
        for k in range(2):
            L.append(f'v_add_f32 v{dd+k}, 2.0, v{n+k}')
        for k in range(2):
            L.append(f'v_rcp_f32 v{dd+k}, v{dd+k}')
        for k in range(2):
            L.append(f'v_mul_f32 v{n+k}, v{n+k}, v{acc+2*i+k}')
        for k in range(2):
            L.append(f'v_mul_f32 v{n+k}, v{n+k}, v{dd+k}')
        dst = acc + 8 * (i // 4) + (i % 4)
        L.append(f'v_cvt_pk_bf16_f32 v{dst}, v{n}, v{n+1}')
    return L


def gen_k2(stamps=False, stmod=''):
    name = 'k2_kernel'
    p = Prog(name)
    T = V_T
    p.e(f'{name}:')
    p.e('s_cmp_ge_u32 s2, 256')
    p.e('s_cbranch_scc1 K2_END')
    p.e(f's_load_dwordx2 s[{S_PWQ}:{S_PWQ+1}], s[0:1], {KA_WQ}')
    p.e(f's_load_dwordx2 s[{S_PW1}:{S_PW1+1}], s[0:1], {KA_W1}')
    p.e(f's_load_dwordx2 s[{S_PB1}:{S_PB1+1}], s[0:1], {KA_B1}')
    p.e(f's_load_dwordx2 s[{S_PWO}:{S_PWO+1}], s[0:1], {KA_WO}')
    p.e(f's_load_dwordx2 s[{S_PW2}:{S_PW2+1}], s[0:1], {KA_W2}')
    p.e(f's_load_dwordx2 s[{S_WS}:{S_WS+1}], s[0:1], {KA_WS}')
    lane = T + 1
    p.e(f'v_lshrrev_b32 v{T}, 6, v0')
    p.e(f'v_and_b32 v{lane}, 63, v0')
    p.e(f'v_readfirstlane_b32 s{S_WAVE}, v{T}')
    p.e(f'v_lshlrev_b32 v{V_LANE16}, 4, v{lane}')
    p.e(f's_and_b32 s{S_H}, s2, 31')
    p.e(f's_lshr_b32 s{S_PI}, s2, 5')
    p.e(f's_sub_u32 s{S_QBA}, 15, s{S_PI}')
    p.e(f's_mov_b32 s{S_QBB}, s{S_PI}')
    p.e(f's_and_b32 s{S_HW}, s{S_WAVE}, 3')
    p.e(f's_mov_b32 s{S_SLOT}, 0')
    p.e('s_waitcnt lgkmcnt(0)')
    srd(p, S_KV, S_WS, S_WS + 1, 0x2000000)
    srd(p, S_WQ, S_PWQ, S_PWQ + 1, 640 * 8192)
    srd(p, S_W1, S_PW1, S_PW1 + 1, 640 * 3456)
    srd(p, S_XN, S_WS, S_WS + 1, 2621440, XN_OFF)
    srd(p, S_CTX, S_WS, S_WS + 1, AB_SIZE, AB_OFF)
    srd(p, S_B1, S_PB1, S_PB1 + 1, 3456)
    srd(p, S_RO, S_WS, S_WS + 1, 182 * 40 * 1024, WOF_OFF)
    p.e(f's_lshl_b32 s{S_T}, s2, 2')
    p.e(f's_add_u32 s{S_T}, s{S_T}, s{S_HW}')
    p.e(f's_mul_i32 s{S_T2}, s{S_T}, 52429')
    p.e(f's_lshr_b32 s{S_T2}, s{S_T2}, 18')
    p.e(f's_mov_b32 s{S_RL+2}, {1728*1280}')
    p.e(f's_cmp_lt_u32 s{S_T2}, 128')
    p.e(f's_cselect_b32 s{S_RL}, s{S_PWO}, s{S_PW2}')
    p.e(f's_cselect_b32 s{S_RL+1}, s{S_PWO+1}, s{S_PW2+1}')
    p.e(f's_cselect_b32 s{S_RL+2}, {4096*1280}, s{S_RL+2}')
    p.e(f's_mov_b32 s{S_RL+3}, 0x20000')
    p.e(f's_cmp_ge_u32 s{S_WAVE}, 4')
    p.e('s_cbranch_scc1 K2_HELPER')
    pre_trace = list(p.trace)
    pre_tags = list(p.vm_tags)
    texts = [p.text()]
    probs = []

    c = Prog(name + '_C')
    c.trace = list(pre_trace)
    c.vm_tags = list(pre_tags)
    c.e('s_setprio 2')
    if stamps:
        stamp_code(c, 0, 1, 2, S_WS, S_TMP8, T + 4, T + 5)
    hh, r_, gi1, c_ = T + 2, T + 3, T + 4, T + 5
    c.e(f'v_lshrrev_b32 v{hh}, 5, v{lane}')
    c.e(f's_min_u32 s{S_T}, s{S_H}, 26')
    c.e(f's_lshl_b32 s{S_T}, s{S_T}, 7')
    c.e(f'v_lshlrev_b32 v{T+6}, 3, v{hh}')
    BT = V_WF
    for cc in range(2):
        for g in range(4):
            b = BT + (cc * 4 + g) * 2
            c.e(f'buffer_load_dwordx2 v[{b}:{b+1}], v{T+6}, s[{S_B1}:{S_B1+3}], s{S_T} offen offset:{cc*64 + g*16}', 'bias')
    c.e(f'v_bfe_u32 v{r_}, v{lane}, 2, 2')
    c.e(f'v_bfe_u32 v{gi1}, v{lane}, 4, 1')
    c.e(f'v_and_b32 v{c_}, 3, v{lane}')
    c.e(f'v_lshlrev_b32 v{c_}, 3, v{c_}')
    c.e(f'v_lshl_add_u32 v{c_}, v{gi1}, 5, v{c_}')
    c.e(f'v_lshl_add_u32 v{gi1}, v{hh}, 3, v{r_}')
    c.e(f'v_lshl_add_u32 v{V_AWQ}, v{gi1}, 8, v{c_}')
    c.e(f'v_lshl_add_u32 v{V_AWQ}, v{r_}, 6, v{V_AWQ}')
    for d in range(1, 4):
        c.e(f'v_xor_b32 v{V_AWQ+d}, {d*64}, v{V_AWQ}')
    c.e(f'v_lshl_add_u32 v{V_AW1}, v{gi1}, 7, v{c_}')
    c.e(f'v_lshrrev_b32 v{r_}, 1, v{r_}')
    c.e(f'v_lshl_add_u32 v{V_AW1}, v{r_}, 6, v{V_AW1}')
    c.e(f'v_xor_b32 v{V_AW1+1}, 64, v{V_AW1}')
    c.e(f's_lshl_b32 s{S_T2}, s{S_HW}, 11')
    c.e(f'v_add_u32 v{V_AXN}, s{S_T2}, v{V_LANE16}')
    q_ = T + 3
    c.e(f'v_and_b32 v{q_}, 15, v{lane}')
    c.e(f'v_lshl_add_u32 v{q_}, v{hh}, 4, v{q_}')
    c.e(f'v_lshlrev_b32 v{q_}, 4, v{q_}')
    c.e(f'v_bfe_u32 v{gi1}, v{lane}, 4, 1')
    c.e(f's_mov_b32 s{S_T2}, {182*1024}')
    c.e(f'v_mul_lo_u32 v{gi1}, v{gi1}, s{S_T2}')
    c.e(f'v_add_u32 v{V_CTXOFF}, v{gi1}, v{q_}')
    c.e(f'v_and_b32 v{q_}, 31, v{lane}')
    c.e(f'v_lshlrev_b32 v{gi1}, 2, v{hh}')
    c.e(f'v_sub_u32 v{V_Z0}, v{q_}, v{gi1}')
    c.e(f's_lshl_b32 s{S_T2}, s{S_HW}, 5')
    c.e(f'v_add_u32 v{V_Z0}, s{S_T2}, v{V_Z0}')
    c.e(f'v_mov_b32 v{V_NINF}, 0xff800000')
    c.e(f's_mov_b32 s{S_LOG2E}, {hex(f2u(1.4426950408889634))}')
    c.wait_vm('bias')
    for cc in range(2):
        for g in range(4):
            for k in range(2):
                src = BT + (cc * 4 + g) * 2 + k
                for b in range(2):
                    d = V_H + (b * 2 + cc) * 16 + g * 4 + 2 * k
                    c.e(f'v_lshlrev_b32 v{d}, 16, v{src}')
                    c.e(f'v_and_b32 v{d+1}, 0xffff0000, v{src}')

    def addr_adv():
        L = []
        for r in [V_AWQ + i for i in range(4)] + [V_AW1, V_AW1 + 1, V_AXN]:
            L.append(f'v_add_u32 v{r}, {SLOT}, v{r}')
            L.append(f'v_and_b32 v{r}, {SLOT*NSLOT-1}, v{r}')
        return L
    c.e('s_barrier')
    c.many(proj_reads_x(0))
    for f in range(6):
        c.many(proj_reads_w(f, 0))
    c.e('s_waitcnt lgkmcnt(0)')
    c.many(proj_step(0, True, True))
    c.many(addr_adv())
    c.e(f's_mov_b32 s{S_CNT}, 19')
    c.e('K2_PLOOP:')
    c.loop_begin()
    c.e('s_barrier')
    c.many(proj_step(1, False, True))
    st = proj_step(0, False, True)
    c.many(st)
    c.many(addr_adv())
    c.e(f's_sub_u32 s{S_CNT}, s{S_CNT}, 1')
    c.e(f's_cmp_lg_u32 s{S_CNT}, 0')
    c.e('s_cbranch_scc1 K2_PLOOP')
    c.loop_end(2)
    c.many(proj_step(1, False, False))
    if stamps:
        stamp_code(c, 1, 1, 2, S_WS, S_TMP8, T + 4, T + 5)
    c.e('s_nop 7')
    c.e(f's_mov_b32 s{S_SLOT}, {(20 % NSLOT) * SLOT}')
    c.e(f's_lshl_b32 s{S_T2}, s{S_HW}, 13')
    c.e(f's_add_u32 s{S_T2}, s{S_T2}, {PARK}')
    c.e(f'v_add_u32 v{V_AD}, s{S_T2}, v{V_LANE16}')
    for i in range(32):
        c.e(f'v_cvt_pk_bf16_f32 v{V_QBACC+i}, v{V_QBACC+2*i}, v{V_QBACC+2*i+1}')
    for i in range(8):
        c.e(f'ds_write_b128 v{V_AD}, v[{V_QBACC+4*i}:{V_QBACC+4*i+3}] offset:{i*1024}')
    for i in range(32):
        c.e(f'v_cvt_pk_bf16_f32 v{V_Q+i}, v{V_QAACC+2*i}, v{V_QAACC+2*i+1}')
    for b in range(2):
        qb = S_QBA if b == 0 else S_QBB
        c.e(f's_lshl_b32 s{S_T}, s{qb}, 2')
        c.e(f's_add_u32 s{S_T}, s{S_T}, s{S_HW}')
        c.e(f's_mul_i32 s{S_T}, s{S_T}, 364')
        c.e(f's_min_u32 s{S_T2}, s{S_H}, 26')
        c.e(f's_lshl_b32 s{S_T2}, s{S_T2}, 1')
        c.e(f's_add_u32 s{S_T}, s{S_T}, s{S_T2}')
        c.e(f's_add_u32 s{S_T}, s{S_T}, 128')
        c.e(f's_lshl_b32 s{S_T}, s{S_T}, 10')
        for cc in range(2):
            acc = V_H + (b * 2 + cc) * 16
            c.many(mish_tile(acc))
            for t in range(2):
                c.e(f'buffer_store_dwordx4 v[{acc+8*t}:{acc+8*t+3}], v{V_CTXOFF}, s[{S_CTX}:{S_CTX+3}], s{S_T} offen offset:{cc*1024 + t*512}{stmod}', 'act')
    if stamps:
        stamp_code(c, 2, 1, 2, S_WS, S_TMP8, T + 4, T + 5)
    c.e(f's_mov_b32 s{S_BLK}, 0')
    c.e(f's_mov_b32 s{S_QB}, s{S_QBA}')
    c.e('K2_BLOCK:')
    blk_start = len(c.trace)
    c.e(f'v_add_u32 v{V_AD}, s{S_SLOT}, v{V_LANE16}')
    c.e('s_barrier')
    for ks in range(8):
        c.e(f'ds_read_b128 v[{V_K+4*ks}:{V_K+4*ks+3}], v{V_AD} offset:{ks*1024}')
    zero = [f'v_mov_b32 v{V_CI+i}, 0' for i in range(16)]
    c.many(zero)
    zero = [f'v_mov_b32 v{V_O+i}, 0' for i in range(64)] + [f'v_mov_b32 v{V_V+i}, 0' for i in range(32)] + \
           [f'v_mov_b32 v{V_P+8+i}, 0' for i in range(8)] + [f'v_mov_b32 v{V_L}, 0', f'v_mov_b32 v{V_Z}, v{V_Z0}']
    c.many(zero[:64])
    zero = zero[64:]
    c.e(f's_mov_b32 s{S_THR}, {hex(f2u(-1.0))}')
    c.e(f's_mov_b32 s{S_FLOOR}, 0xff800000')
    c.e('s_waitcnt lgkmcnt(0)')
    mf = []
    pinned = []
    for ks in range(8):
        cc_ = '0' if ks == 0 else f'v[{V_S}:{V_S+15}]'
        mf.append(f'v_mfma_f32_32x32x16_bf16 v[{V_S}:{V_S+15}], v[{V_K+4*ks}:{V_K+4*ks+3}], v[{V_Q+4*ks}:{V_Q+4*ks+3}], {cc_}')
        pinned.append([f'ds_read_b128 v[{V_K+4*ks}:{V_K+4*ks+3}], v{V_AD} offset:{8192 + ks*1024}'])
    adv = [f's_add_u32 s{S_SLOT}, s{S_SLOT}, {SLOT}', f's_and_b32 s{S_SLOT}, s{S_SLOT}, {SLOT*NSLOT-1}']
    c.many(pack_gaps(mf, pinned, zero + adv))
    c.e(f'v_add_u32 v{V_AD}, s{S_SLOT}, v{V_LANE16}')
    c.e('s_waitcnt lgkmcnt(0)')
    c.e(f's_lshl_b32 s{S_CNT}, s{S_QB}, 1')
    c.e(f's_cmp_eq_u32 s{S_CNT}, 0')
    c.e('s_cbranch_scc1 K2_MASKED')

    def body(masked, site0):
        tail = adv + [f's_sub_u32 s{S_CNT}, s{S_CNT}, 1']
        L = iteration(0, masked, 0, site0, extra_pre=['s_barrier'])
        L += iteration(1, masked, 1, site0 + 1, extra_stream=tail)
        L.append(f'v_add_u32 v{V_AD}, s{S_SLOT}, v{V_LANE16}')
        L.append(f's_cmp_lg_u32 s{S_CNT}, 0')
        return L
    c.e('K2_ULOOP:')
    c.loop_begin()
    c.many(body(False, 0))
    c.e('s_cbranch_scc1 K2_ULOOP')
    c.loop_end(1)
    c.e('K2_MASKED:')
    c.e(f's_mov_b32 s{S_CNT}, 2')
    c.e('K2_MLOOP:')
    c.loop_begin()
    c.many(body(True, 2))
    c.e('s_cbranch_scc1 K2_MLOOP')
    c.loop_end(1)
    c.e('s_waitcnt lgkmcnt(0)')
    Pp = V_P + 8
    fin = []
    for dt in range(4):
        for t in range(2):
            f = dt * 2 + t
            o = V_O + 16 * dt
            fin.append(f'v_mfma_f32_32x32x16_bf16 v[{o}:{o+15}], v[{V_V+4*f}:{V_V+4*f+3}], v[{Pp+4*t}:{Pp+4*t+3}], v[{o}:{o+15}]')
    lt = [f'v_mov_b32 v{T}, v{V_L}', 's_nop 1', f'v_permlane32_swap_b32 v{V_L}, v{T}', f'v_add_f32 v{V_L}, v{V_L}, v{T}',
          f'v_rcp_f32 v{V_L}, v{V_L}',
          f's_lshl_b32 s{S_T}, s{S_QB}, 2', f's_add_u32 s{S_T}, s{S_T}, s{S_HW}', f's_mul_i32 s{S_T}, s{S_T}, {364*1024}',
          f's_lshl_b32 s{S_T2}, s{S_H}, 12', f's_add_u32 s{S_CTXO}, s{S_T}, s{S_T2}',
          f's_lshl_b32 s{S_T2}, s{S_HW}, 13', f's_add_u32 s{S_T2}, s{S_T2}, {PARK}',
          f'v_add_u32 v{T+2}, s{S_T2}, v{V_LANE16}']
    lt += [f'ds_read_b128 v[{V_Q+4*i}:{V_Q+4*i+3}], v{T+2} offset:{i*1024}' for i in range(8)]
    c.many(pack_gaps(fin, [[] for _ in fin], lt, budget=4))
    c.e('s_nop 3')
    for dt in range(4):
        o = V_O + 16 * dt
        if dt == 3:
            c.e('s_nop 0')
        for r in range(16):
            c.e(f'v_mul_f32 v{o+r}, v{o+r}, v{V_L}')
        for t in range(2):
            for i in range(4):
                c.e(f'v_cvt_pk_bf16_f32 v{o+8*t+i}, v{o+8*t+2*i}, v{o+8*t+2*i+1}')
            c.e(f'buffer_store_dwordx4 v[{o+8*t}:{o+8*t+3}], v{V_CTXOFF}, s[{S_CTX}:{S_CTX+3}], s{S_CTXO} offen offset:{dt*1024 + t*512}{stmod}', 'ctx')
    c.e(f's_mov_b32 s{S_QB}, s{S_QBB}')
    c.e(f's_add_u32 s{S_BLK}, s{S_BLK}, 1')
    c.e(f's_cmp_lt_u32 s{S_BLK}, 2')
    c.e('s_waitcnt lgkmcnt(0)')
    c.e('s_cbranch_scc1 K2_BLOCK')
    c.trace += c.trace[blk_start:]
    if stamps:
        c.e('s_waitcnt vmcnt(0)')
        stamp_code(c, 3, 1, 2, S_WS, S_TMP8, T + 4, T + 5)
    c.e('s_endpgm')
    probs += c.check()
    st = Prog(name + '_FIX')
    for site in range(4):
        st.e(f'K2_STUB{site}:')
        st.e(f's_call_b64 s[{S_RET}:{S_RET+1}], K2_FIX{site & 1}')
        st.e(f's_branch K2_RET{site}')
    for par in range(2):
        fx = Prog(name + f'_FIX{par}')
        fx.many(iteration(par, False, 0, 9)[:-3])
        n0 = len(fx.items)
        fx.many(fixup(par))
        fx.many(iteration(1 - par, False, 0, 9)[:-3])
        probs += [x for x in fx.check() if 'pending' not in x]
        st.many(fixup(par))
    texts.append(c.text())
    texts.append(st.text())

    h = Prog(name + '_H')
    h.trace = list(pre_trace)
    h.vm_tags = list(pre_tags)
    h.e('K2_HELPER:')
    VW, VW1, VRL, VT0, VT1, VT2 = 2, 3, 4, 5, 6, 7
    S_U, S_RKS, S_RSRC, S_RDST = 60, 61, 62, 63
    h.e(f's_mov_b32 s{S_U}, s{S_T}')
    h.e(f's_mov_b32 s{S_RKS}, s{S_T2}')
    h.e(f's_mul_i32 s{S_T}, s{S_RKS}, 5')
    h.e(f's_sub_u32 s{S_T}, s{S_U}, s{S_T}')
    h.e(f's_and_b32 s{S_T2}, s{S_RKS}, 127')
    h.e(f's_mul_i32 s{S_RSRC}, s{S_T2}, {32*1280}')
    h.e(f's_lshl_b32 s{S_T2}, s{S_T}, 8')
    h.e(f's_add_u32 s{S_RSRC}, s{S_RSRC}, s{S_T2}')
    h.e(f's_mul_i32 s{S_RDST}, s{S_RKS}, {40*1024}')
    h.e(f's_lshl_b32 s{S_T2}, s{S_T}, 13')
    h.e(f's_add_u32 s{S_RDST}, s{S_RDST}, s{S_T2}')
    h.e(f'v_lshrrev_b32 v{VT0}, 4, v{lane}')
    h.e(f'v_lshlrev_b32 v{VT1}, 2, v{VT0}')
    h.e(f'v_and_b32 v{VT2}, 15, v{lane}')
    h.e(f'v_xor_b32 v{VT1}, v{VT1}, v{VT2}')
    h.e(f'v_lshlrev_b32 v{VT1}, 4, v{VT1}')
    h.e(f'v_lshl_add_u32 v{VW}, v{VT0}, 13, v{VT1}')
    h.e(f's_movk_i32 s{S_T}, 1280')
    h.e(f'v_mul_lo_u32 v{VRL}, v{VT0}, s{S_T}')
    h.e(f'v_add_u32 v{VRL}, v{VRL}, v{VT1}')
    h.e(f'v_and_b32 v{VT0}, 1, v{VT0}')
    h.e(f'v_lshlrev_b32 v{VT0}, 2, v{VT0}')
    h.e(f'v_and_b32 v{VT1}, 7, v{lane}')
    h.e(f'v_xor_b32 v{VT0}, v{VT0}, v{VT1}')
    h.e(f'v_lshlrev_b32 v{VT0}, 4, v{VT0}')
    h.e(f'v_lshrrev_b32 v{VT1}, 3, v{lane}')
    h.e(f's_movk_i32 s{S_T}, 3456')
    h.e(f'v_mul_lo_u32 v{VW1}, v{VT1}, s{S_T}')
    h.e(f'v_add_u32 v{VW1}, v{VW1}, v{VT0}')
    h.e(f's_lshl_b32 s{S_GWQ}, s{S_HW}, 16')
    h.e(f's_lshl_b32 s{S_T}, s{S_H}, 8')
    h.e(f's_add_u32 s{S_GWQ}, s{S_GWQ}, s{S_T}')
    h.e(f's_mul_i32 s{S_GW1}, s{S_HW}, {8*3456}')
    h.e(f's_min_u32 s{S_T}, s{S_H}, 26')
    h.e(f's_lshl_b32 s{S_T}, s{S_T}, 7')
    h.e(f's_add_u32 s{S_GW1}, s{S_GW1}, s{S_T}')
    for g, qb in ((S_GXA, S_QBA), (S_GXB, S_QBB)):
        h.e(f's_lshl_b32 s{S_T}, s{qb}, 2')
        h.e(f's_add_u32 s{S_T}, s{S_T}, s{S_HW}')
        h.e(f's_mul_i32 s{g}, s{S_T}, 40960')
    h.e(f's_lshl_b32 s{S_L0}, s{S_HW}, 11')
    h.e(f's_lshl_b32 s{S_L1}, s{S_HW}, 10')
    h.e(f's_add_u32 s{S_L1}, s{S_L1}, 8192')
    h.e(f's_add_u32 s{S_L2}, s{S_L0}, 16384')
    h.e(f's_lshl_b32 s{S_L3}, s{S_HW}, 12')

    def adv_slot():
        return [f's_add_u32 s{S_SLOT}, s{S_SLOT}, {SLOT}', f's_and_b32 s{S_SLOT}, s{S_SLOT}, {SLOT*NSLOT-1}']

    def issue_P():
        L = []
        L.append(f's_add_u32 m0, s{S_SLOT}, s{S_L0}')
        L.append(f's_add_u32 s{S_T}, s{S_GWQ}, {4*8192 - 1024}')
        L.append(f'buffer_load_dwordx4 v{VW}, s[{S_WQ}:{S_WQ+3}], s{S_GWQ} offen lds')
        L.append(f'buffer_load_dwordx4 v{VW}, s[{S_WQ}:{S_WQ+3}], s{S_T} offen offset:1024 lds')
        L.append(f's_add_u32 m0, s{S_SLOT}, s{S_L1}')
        L.append(f's_add_u32 s{S_GWQ}, s{S_GWQ}, {32*8192}')
        L.append(f'buffer_load_dwordx4 v{VW1}, s[{S_W1}:{S_W1+3}], s{S_GW1} offen lds')
        L.append(f's_add_u32 m0, s{S_SLOT}, s{S_L2}')
        L.append(f's_add_u32 s{S_GW1}, s{S_GW1}, {32*3456}')
        L.append(f'buffer_load_dwordx4 v{V_LANE16}, s[{S_XN}:{S_XN+3}], s{S_GXA} offen lds')
        L.append(f'buffer_load_dwordx4 v{V_LANE16}, s[{S_XN}:{S_XN+3}], s{S_GXA} offen offset:1024 lds')
        L.append(f's_add_u32 m0, m0, 8192')
        L.append(f's_add_u32 s{S_GXA}, s{S_GXA}, 2048')
        L.append(f'buffer_load_dwordx4 v{V_LANE16}, s[{S_XN}:{S_XN+3}], s{S_GXB} offen lds')
        L.append(f'buffer_load_dwordx4 v{V_LANE16}, s[{S_XN}:{S_XN+3}], s{S_GXB} offen offset:1024 lds')
        L.append(f's_add_u32 s{S_GXB}, s{S_GXB}, 2048')
        return L + adv_slot()

    def issue_K():
        L = [f's_add_u32 m0, s{S_SLOT}, s{S_L3}', 's_nop 0']
        for i in range(4):
            L.append(f'buffer_load_dwordx4 v{V_LANE16}, s[{S_KV}:{S_KV+3}], s{S_GK} offen offset:{i*1024} lds')
        L.append(f's_add_u32 s{S_GK}, s{S_GK}, 16384')
        return L

    def issue_V():
        L = [f's_add_u32 m0, m0, 16384', 's_nop 0']
        for i in range(4):
            L.append(f'buffer_load_dwordx4 v{V_LANE16}, s[{S_KV}:{S_KV+3}], s{S_GV} offen offset:{i*1024} lds')
        L.append(f's_add_u32 s{S_GV}, s{S_GV}, 16384')
        return L

    def issue_pro():
        L = [f's_lshl_b32 s{S_GK}, s{S_H}, 19', f's_add_u32 s{S_GK}, s{S_GK}, s{S_L3}',
             f's_add_u32 s{S_GV}, s{S_GK}, {VF_OFF}']
        return L + issue_K() + adv_slot()

    def issue_body():
        return issue_K() + issue_V() + adv_slot()

    h.many(issue_P())
    h.many(issue_P())
    h.e(f's_lshl_b32 s{S_T2}, s{S_HW}, 13')
    h.e(f's_add_u32 s{S_T2}, s{S_T2}, {PARK}')
    for i in range(8):
        h.e(f's_add_u32 m0, s{S_T2}, {i*1024}')
        h.e(f's_add_u32 s{S_T}, s{S_RSRC}, {i*4*1280}')
        h.e(f'buffer_load_dwordx4 v{VRL}, s[{S_RL}:{S_RL+3}], s{S_T} offen lds')
    h.e('s_waitcnt vmcnt(15)')
    h.e('s_barrier')
    h.many(issue_P())
    h.e('s_waitcnt vmcnt(7)')
    h.e('s_barrier')
    h.many(issue_P())
    h.e(f'v_bfe_u32 v{VT0}, v{lane}, 2, 2')
    h.e(f'v_bfe_u32 v{VT1}, v{lane}, 5, 1')
    h.e(f'v_lshl_add_u32 v{VT2}, v{VT1}, 4, v{VT0}')
    h.e(f'v_bfe_u32 v{VT1}, v{lane}, 4, 1')
    h.e(f'v_lshl_add_u32 v{VT2}, v{VT1}, 2, v{VT2}')
    h.e(f'v_lshlrev_b32 v{VT2}, 8, v{VT2}')
    h.e(f'v_lshl_add_u32 v{VT2}, v{VT0}, 6, v{VT2}')
    h.e(f'v_and_b32 v{VT1}, 3, v{lane}')
    h.e(f'v_lshl_add_u32 v{VT2}, v{VT1}, 3, v{VT2}')
    h.e(f'v_add_u32 v{VT2}, s{S_T2}, v{VT2}')
    RB = 16
    for g in range(4):
        h.e(f'v_xor_b32 v{8+g}, {g*64}, v{VT2}')
    for nt in range(8):
        for h2 in range(2):
            h.e(f'ds_read_b64_tr_b16 v[{RB+4*nt+2*h2}:{RB+4*nt+2*h2+1}], v{8+(nt>>1)} offset:{(nt&1)*32 + h2*8*256}')
    h.e('s_waitcnt lgkmcnt(0)')
    h.e(f's_add_u32 s{S_T}, s{S_RDST}, 4096')
    for nt in range(8):
        so = S_RDST if nt < 4 else S_T
        h.e(f'buffer_store_dwordx4 v[{RB+4*nt}:{RB+4*nt+3}], v{V_LANE16}, s[{S_RO}:{S_RO+3}], s{so} offen offset:{(nt&3)*1024}')
    h.e('s_waitcnt vmcnt(15)')
    h.e('s_barrier')
    h.many(issue_P())
    h.e(f's_mov_b32 s{S_CNT}, 15')
    h.e('K2_HP:')
    h.loop_begin()
    h.e('s_waitcnt vmcnt(7)')
    h.e('s_barrier')
    h.many(issue_P())
    h.e(f's_sub_u32 s{S_CNT}, s{S_CNT}, 1')
    h.e(f's_cmp_lg_u32 s{S_CNT}, 0')
    h.e('s_cbranch_scc1 K2_HP')
    h.loop_end(1)
    h.e('s_waitcnt vmcnt(7)')
    h.e('s_barrier')
    h.many(issue_pro())
    h.e('s_waitcnt vmcnt(4)')
    h.e('s_barrier')
    h.many(issue_body())
    h.e(f's_mov_b32 s{S_BLK}, 0')
    h.e(f's_mov_b32 s{S_QB}, s{S_QBA}')
    h.e('K2_HBLOCK:')
    h.e('s_waitcnt vmcnt(8)')
    h.e('s_barrier')
    h.many(issue_body())
    h.e(f's_lshl_b32 s{S_CNT}, s{S_QB}, 1')
    h.e(f's_cmp_eq_u32 s{S_CNT}, 0')
    h.e('s_cbranch_scc1 K2_HTAIL')
    h.e('K2_HB:')
    h.loop_begin()
    h.e('s_waitcnt vmcnt(8)')
    h.e('s_barrier')
    h.many(issue_body())
    h.e(f's_sub_u32 s{S_CNT}, s{S_CNT}, 1')
    h.e(f's_cmp_lg_u32 s{S_CNT}, 0')
    h.e('s_cbranch_scc1 K2_HB')
    h.loop_end(1)
    h.e('K2_HTAIL:')
    h.e(f's_cmp_eq_u32 s{S_BLK}, 1')
    h.e('s_cbranch_scc1 K2_HLAST')
    h.e('s_waitcnt vmcnt(8)')
    h.e('s_barrier')
    h.many(issue_pro())
    h.e('s_waitcnt vmcnt(4)')
    h.e('s_barrier')
    h.many(issue_body())
    h.e(f's_mov_b32 s{S_BLK}, 1')
    h.e(f's_mov_b32 s{S_QB}, s{S_QBB}')
    h.e('s_branch K2_HBLOCK')
    h.e('K2_HLAST:')
    h.e('s_waitcnt vmcnt(8)')
    h.e('s_barrier')
    h.e('s_waitcnt vmcnt(0)')
    h.e('s_barrier')
    h.e('K2_END:')
    h.e('s_endpgm')
    probs += h.check()
    texts.append(h.text())

    hdr = f'.globl {name}\n.p2align 8\n.type {name},@function\n'
    launch = f'; @launch kernel={name} grid=(256,1,1) block=(512,1,1) lds={LDS_BYTES}'
    return launch, hdr + '\n'.join(texts), kernel_desc(name, 256, 256), probs


if __name__ == '__main__':
    l, t, d, probs = gen_k2()
    print(len(t.split('\n')), 'lines')
    for x in probs[:60]:
        print(x)
```

```python
from common import *
import struct
f2u = lambda f: struct.unpack('<I', struct.pack('<f', f))[0]

S_WAVE = 3
S_PX, S_POUT, S_WS = 4, 6, 8
S_AB, S_WF, S_X, S_OUT = 12, 16, 20, 24
S_GA, S_GW = 28, 29
S_T, S_T2, S_CNT = 30, 31, 32
S_RT, S_CT = 33, 34
S_GA13, S_GW13, S_GA14, S_GW14 = 35, 36, 37, 38
S_NL2E = 39
S_TMP8 = 40

V_ACC1 = 0
V_ACC2 = 80
V_X = 160
V_OFFA = 170
V_OFFW = 174
V_XOFF = 176
V_LANE16 = 177
V_T = 178
D = 4
NPOS = 46
LDS_BYTES = 163840

def loads(stage):
    b = stage * 36
    LA = [f'buffer_load_dwordx4 a[{b+4*i}:{b+4*i+3}], v{V_OFFA+i}, s[{S_AB}:{S_AB+3}], s{S_GA} offen' for i in range(4)]
    LW = []
    for nt in range(5):
        r = b + 16 + 4 * nt
        if nt < 4:
            LW.append(f'buffer_load_dwordx4 a[{r}:{r+3}], v{V_OFFW}, s[{S_WF}:{S_WF+3}], s{S_GW} offen offset:{nt*1024}')
        else:
            LW.append(f'buffer_load_dwordx4 a[{r}:{r+3}], v{V_OFFW+1}, s[{S_WF}:{S_WF+3}], s{S_GW} offen')
    return LA, LW

def adv(nextpos):
    if nextpos == 13:
        return [f's_mov_b32 s{S_GA}, s{S_GA13}', f's_mov_b32 s{S_GW}, s{S_GW13}']
    if nextpos == 14:
        return [f's_mov_b32 s{S_GA}, s{S_GA14}', f's_mov_b32 s{S_GW}, s{S_GW14}']
    return [f's_add_u32 s{S_GA}, s{S_GA}, 1024', f's_add_u32 s{S_GW}, s{S_GW}, 40960']

def step(p, pos, first, inflight_after, prefetch=True, extra=None):
    st = pos % D
    b = st * 36
    acc = V_ACC2 if pos < 14 else V_ACC1
    p.e(f's_waitcnt vmcnt({inflight_after})')
    LA, LW = loads(st)
    extra = list(extra or [])
    for nt in range(5):
        for rt in range(4):
            a = acc + (rt * 5 + nt) * 4
            c = '0' if first else f'v[{a}:{a+3}]'
            p.e(f'v_mfma_f32_16x16x32_bf16 v[{a}:{a+3}], a[{b+16+4*nt}:{b+16+4*nt+3}], a[{b+4*rt}:{b+4*rt+3}], {c}')
            if extra:
                p.e(extra.pop(0))
        if prefetch:
            p.e(LW[nt])
    if prefetch:
        p.many(LA)
        p.many(adv(pos + D + 1))
    p.many(extra)

def gen_k3(stamps=False, stmod=''):
    name = 'k3_kernel'
    p = Prog(name)
    T = V_T
    p.e(f'{name}:')
    p.e('s_cmp_ge_u32 s2, 256')
    p.e('s_cbranch_scc1 K3_END')
    p.e(f's_load_dwordx2 s[{S_PX}:{S_PX+1}], s[0:1], {KA_X}')
    p.e(f's_load_dwordx2 s[{S_POUT}:{S_POUT+1}], s[0:1], {KA_OUT}')
    p.e(f's_load_dwordx2 s[{S_WS}:{S_WS+1}], s[0:1], {KA_WS}')
    lane = T + 1
    p.e(f'v_lshrrev_b32 v{T}, 6, v0')
    p.e(f'v_and_b32 v{lane}, 63, v0')
    p.e(f'v_readfirstlane_b32 s{S_WAVE}, v{T}')
    p.e(f'v_lshlrev_b32 v{V_LANE16}, 4, v{lane}')
    p.e(f's_bfe_u32 s{S_RT}, s2, 0x20001')
    p.e(f's_lshl_b32 s{S_RT}, s{S_RT}, 3')
    p.e(f's_lshr_b32 s{S_T}, s2, 5')
    p.e(f's_add_u32 s{S_RT}, s{S_RT}, s{S_T}')
    p.e(f's_and_b32 s{S_CT}, s2, 1')
    p.e(f's_lshl_b32 s{S_CT}, s{S_CT}, 2')
    p.e(f's_bfe_u32 s{S_T}, s2, 0x20003')
    p.e(f's_add_u32 s{S_CT}, s{S_CT}, s{S_T}')
    for i in range(4):
        p.e(f'v_add_u32 v{V_OFFA+i}, {i*182*1024}, v{V_LANE16}')
    p.e(f'v_mov_b32 v{V_OFFW}, v{V_LANE16}')
    p.e(f'v_add_u32 v{V_OFFW+1}, 4096, v{V_LANE16}')
    p.e(f's_mul_i32 s{S_T}, s{S_RT}, {4*182*1024}')
    p.e(f's_mul_i32 s{S_T2}, s{S_CT}, 5120')
    p.e(f's_lshl_b32 s{S_GA14}, s{S_WAVE}, 15')
    p.e(f's_add_u32 s{S_GA14}, s{S_GA14}, s{S_T}')
    p.e(f's_mul_i32 s{S_GW14}, s{S_WAVE}, {32*40960}')
    p.e(f's_add_u32 s{S_GW14}, s{S_GW14}, s{S_T2}')
    p.e(f's_mul_i32 s{S_CNT}, s{S_WAVE}, 14')
    p.e(f's_cmp_eq_u32 s{S_WAVE}, 3')
    p.e(f's_cselect_b32 s{S_GA}, -1, 0')
    p.e(f's_add_u32 s{S_CNT}, s{S_CNT}, s{S_GA}')
    p.e(f's_add_u32 s{S_CNT}, s{S_CNT}, 128')
    p.e(f's_lshl_b32 s{S_GA}, s{S_CNT}, 10')
    p.e(f's_add_u32 s{S_GA}, s{S_GA}, s{S_T}')
    p.e(f's_mul_i32 s{S_GW}, s{S_CNT}, 40960')
    p.e(f's_add_u32 s{S_GW}, s{S_GW}, s{S_T2}')
    p.e(f's_add_u32 s{S_GA13}, s{S_GA}, {13*1024}')
    p.e(f's_add_u32 s{S_GW13}, s{S_GW}, {13*40960}')
    p.e(f's_cmp_ge_u32 s{S_WAVE}, 2')
    p.e(f's_cselect_b32 s{S_GA13}, 0x40000000, s{S_GA13}')
    p.e(f's_cselect_b32 s{S_GW13}, 0x40000000, s{S_GW13}')
    p.e(f's_mov_b32 s{S_NL2E}, {hex(f2u(-1.4426950408889634))}')
    p.e('s_waitcnt lgkmcnt(0)')
    srd(p, S_AB, S_WS, S_WS + 1, AB_SIZE, AB_OFF)
    srd(p, S_WF, S_WS, S_WS + 1, 182 * 40960, WOF_OFF)
    for pos in range(D):
        LA, LW = loads(pos)
        p.many(LA + LW)
        p.many(adv(pos + 1))
    srd(p, S_X, S_PX, S_PX + 1, 2621440)
    srd(p, S_OUT, S_POUT, S_POUT + 1, 2621440)
    if stamps:
        stamp_code(p, 0, 2, 2, S_WS, S_TMP8, T + 4, T + 5)
    p.e(f's_lshl_b32 s{S_T}, s{S_RT}, 6')
    p.e(f's_lshl_b32 s{S_T2}, s{S_WAVE}, 4')
    p.e(f's_add_u32 s{S_T}, s{S_T}, s{S_T2}')
    p.e(f'v_and_b32 v{T+2}, 15, v{lane}')
    p.e(f'v_add_u32 v{T+2}, s{S_T}, v{T+2}')
    p.e(f's_movk_i32 s{S_T2}, 1280')
    p.e(f'v_mul_lo_u32 v{V_XOFF}, v{T+2}, s{S_T2}')
    p.e(f'v_lshrrev_b32 v{T+2}, 4, v{lane}')
    p.e(f'v_lshl_add_u32 v{V_XOFF}, v{T+2}, 3, v{V_XOFF}')
    p.e(f's_mul_i32 s{S_T}, s{S_CT}, 160')
    p.e(f'v_add_u32 v{V_XOFF}, s{S_T}, v{V_XOFF}')
    ns = 1 if stamps else 0
    step(p, 0, True, 27 + ns)
    for pos in range(1, 4):
        step(p, pos, False, 27)
    for pos in range(4, 8):
        step(p, pos, False, 27)
    for pos in range(8, 14):
        step(p, pos, False, 27)
    wr2 = [f's_mul_i32 s{S_T}, s{S_WAVE}, 20480', f's_add_u32 s{S_T2}, s{S_T}, 81920',
           f'v_add_u32 v{T+2}, s{S_T2}, v{V_LANE16}', f'v_add_u32 v{T+3}, s{S_T}, v{V_LANE16}']
    wr2 += [f'ds_write_b128 v{T+2}, v[{V_ACC2+4*i}:{V_ACC2+4*i+3}] offset:{i*1024}' for i in range(20)]
    step(p, 14, True, 27, extra=wr2[:12])
    step(p, 15, False, 27, extra=wr2[12:])
    p.e(f's_mov_b32 s{S_CNT}, 6')
    p.e('K3_LOOP:')
    p.loop_begin()
    for pos in range(16, 20):
        step(p, pos, False, 27)
    p.e(f's_sub_u32 s{S_CNT}, s{S_CNT}, 1')
    p.e(f's_cmp_lg_u32 s{S_CNT}, 0')
    p.e('s_cbranch_scc1 K3_LOOP')
    p.loop_end(1)
    step(p, 40, False, 27)
    step(p, 41, False, 27)
    xl = [f'buffer_load_dwordx2 v[{V_X+2*nt}:{V_X+2*nt+1}], v{V_XOFF}, s[{S_X}:{S_X+3}], 0 offen offset:{nt*32}' for nt in range(5)]
    p.many(xl)
    step(p, 42, False, 27 + 5, prefetch=False)
    step(p, 43, False, 18 + 5, prefetch=False)
    step(p, 44, False, 9 + 5, prefetch=False)
    step(p, 45, False, 5, prefetch=False)
    if stamps:
        stamp_code(p, 1, 2, 2, S_WS, S_TMP8, T + 4, T + 5)
    p.e('s_nop 7')
    for i in range(20):
        p.e(f'ds_write_b128 v{T+3}, v[{V_ACC1+4*i}:{V_ACC1+4*i+3}] offset:{i*1024}')
    p.e(f's_mul_i32 s{S_T}, s{S_WAVE}, 5120')
    p.e(f'v_add_u32 v{T+2}, s{S_T}, v{V_LANE16}')
    p.e(f'v_add_u32 v{T+3}, 40960, v{T+2}')
    p.e(f'v_add_u32 v{T+4}, 81920, v{T+2}')
    p.e(f'v_add_u32 v{T+5}, 122880, v{T+2}')
    p.e('s_waitcnt lgkmcnt(0)')
    p.e('s_barrier')
    for part in (1, 0):
        for w2 in range(4):
            for nt in range(5):
                r = ((part * 4 + w2) * 5 + nt) * 4
                off = (w2 & 1) * 20480 + nt * 1024
                p.e(f'ds_read_b128 v[{r}:{r+3}], v{T+2+part*2+(w2>>1)} offset:{off}')
    p.e('s_waitcnt vmcnt(0) lgkmcnt(15)')
    p.e('s_waitcnt lgkmcnt(15)')
    B = 80
    for i in range(20):
        p.e(f'v_add_f32 v{B+i}, v{B+i}, v{B+20+i}')
        p.e(f'v_add_f32 v{B+40+i}, v{B+40+i}, v{B+60+i}')
    for i in range(20):
        p.e(f'v_add_f32 v{B+i}, v{B+i}, v{B+40+i}')
    for i in range(0, 20, 2):
        t = B + 20 + i
        p.e(f'v_cvt_pk_bf16_f32 v{t}, v{B+i}, v{B+i+1}')
        p.e(f'v_lshlrev_b32 v{B+i}, 16, v{t}')
        p.e(f'v_and_b32 v{B+i+1}, 0xffff0000, v{t}')
    for i in range(20):
        p.e(f'v_mul_f32 v{B+20+i}, s{S_NL2E}, v{B+i}')
    for i in range(20):
        p.e(f'v_exp_f32 v{B+20+i}, v{B+20+i}')
    for i in range(20):
        p.e(f'v_add_f32 v{B+20+i}, 1.0, v{B+20+i}')
    for i in range(20):
        p.e(f'v_rcp_f32 v{B+20+i}, v{B+20+i}')
    for i in range(20):
        p.e(f'v_mul_f32 v{B+i}, v{B+i}, v{B+20+i}')
    for i in range(0, 20, 2):
        t = B + 20 + i
        p.e(f'v_cvt_pk_bf16_f32 v{t}, v{B+i}, v{B+i+1}')
        p.e(f'v_lshlrev_b32 v{B+i}, 16, v{t}')
        p.e(f'v_and_b32 v{B+i+1}, 0xffff0000, v{t}')
    p.e('s_waitcnt lgkmcnt(0)')
    for i in range(20):
        p.e(f'v_add_f32 v{i}, v{i}, v{20+i}')
        p.e(f'v_add_f32 v{40+i}, v{40+i}, v{60+i}')
    for i in range(20):
        p.e(f'v_add_f32 v{i}, v{i}, v{40+i}')
    for i in range(0, 20, 2):
        t = 20 + i
        p.e(f'v_cvt_pk_bf16_f32 v{t}, v{i}, v{i+1}')
        p.e(f'v_lshlrev_b32 v{i}, 16, v{t}')
        p.e(f'v_and_b32 v{i+1}, 0xffff0000, v{t}')
        p.e(f'v_mul_f32 v{i}, v{i}, v{B+i}')
        p.e(f'v_mul_f32 v{i+1}, v{i+1}, v{B+i+1}')
        p.e(f'v_cvt_pk_bf16_f32 v{t}, v{i}, v{i+1}')
        p.e(f'v_lshlrev_b32 v{i}, 16, v{t}')
        p.e(f'v_and_b32 v{i+1}, 0xffff0000, v{t}')
        x = V_X + i // 2
        p.e(f'v_lshlrev_b32 v{t}, 16, v{x}')
        p.e(f'v_and_b32 v{t+1}, 0xffff0000, v{x}')
        p.e(f'v_add_f32 v{i}, v{i}, v{t}')
        p.e(f'v_add_f32 v{i+1}, v{i+1}, v{t+1}')
        p.e(f'v_cvt_pk_bf16_f32 v{x}, v{i}, v{i+1}')
    for nt in range(5):
        p.e(f'buffer_store_dwordx2 v[{V_X+2*nt}:{V_X+2*nt+1}], v{V_XOFF}, s[{S_OUT}:{S_OUT+3}], 0 offen offset:{nt*32}{stmod}')
    if stamps:
        p.e('s_waitcnt vmcnt(0)')
        stamp_code(p, 2, 2, 2, S_WS, S_TMP8, T + 4, T + 5)
    p.e('K3_END:')
    p.e('s_endpgm')
    hdr = f'.globl {name}\n.p2align 8\n.type {name},@function\n'
    launch = f'; @launch kernel={name} grid=(256,1,1) block=(256,1,1) lds={LDS_BYTES}'
    return launch, hdr + p.text(), kernel_desc(name, 256 + 144, 256), p.check()

if __name__ == '__main__':
    l, t, d, probs = gen_k3()
    print(len(t.split('\n')), 'lines')
    for x in probs[:60]:
        print(x)
```

```python
import sys, importlib
from common import *
import k1
def assemble(parts, path):
    hdr = []
    out = []
    for l, t, d, probs in parts:
        hdr.append(l)
        for x in probs[:30]: print("PROBLEM", x)
    out += hdr
    out.append('.amdgcn_target "amdgcn-amd-amdhsa--gfx950"\n.text')
    for l, t, d, probs in parts: out.append(t)
    out.append('.section .rodata,"a"\n.p2align 6')
    for l, t, d, probs in parts: out.append(d)
    open(path, 'w').write('\n'.join(out) + '\n')
import k2, k3
if __name__ == '__main__':
    st = 'stamps' in sys.argv
    assemble([k1.gen_k1(stamps=st), k2.gen_k2(stamps=st), k3.gen_k3(stamps=st)], 'full_st.s' if st else 'full.s')
```
